```python
import torch

def _softmax(x, axis=-1):
    return torch.softmax(x, dim=axis)
def _gelu(x):
    return torch.nn.functional.gelu(x, approximate="tanh")
def _silu(x):
    return torch.nn.functional.silu(x)
def _sigmoid(x):
    return torch.sigmoid(x)
def _layernorm(x, axis=-1, eps=1e-5):
    m = x.mean(dim=axis, keepdim=True)
    v = x.var(dim=axis, keepdim=True, unbiased=False)
    return (x - m) / torch.sqrt(v + eps)
def _scatter_add(tgt, idx, src, axis=0):
    return tgt.clone().index_add_(axis, idx, src)
def _segment_sum(src, seg, n):
    out = torch.zeros((n,) + src.shape[1:], dtype=src.dtype)
    return out.index_add_(0, seg, src)
def _pad(x, pw):
    flat = tuple(v for pair in reversed(pw) for v in pair)
    return torch.nn.functional.pad(x, flat)

kernel_name = 'gated_mix__sliding_block_cached__glu_gated_reglu__decode'

def setup_inputs():

    _w = (lambda a: (lambda t: t.to(torch.bfloat16) if t.is_floating_point() else t)(torch.as_tensor(a)))
    def _A_setup():
        B, Sq, D = 4, 1, 576
        Hq, Hkv, Sk, Dh = 32, 16, 4096, 128
        assert Hq % Hkv == 0, (Hq, Hkv)
        return {
            "x": _w((lambda *s: torch.randn(*s, dtype=torch.bfloat16) * 0.05)(B, Sq, D)),
            "k_cache": _w((lambda *s: torch.randn(*s, dtype=torch.bfloat16) * 3.2)(B, Hkv, Sk, Dh)),
            "v_cache": _w((lambda *s: torch.randn(*s, dtype=torch.bfloat16) * 0.05)(B, Hkv, Sk, Dh)),
            "wq": _w((lambda *s: torch.randn(*s, dtype=torch.bfloat16) * 3.2)(D, Hq * Dh) * (D ** -0.5)),
            "wo": _w((lambda *s: torch.randn(*s, dtype=torch.bfloat16) * 0.05)(Hq * Dh, D) * ((Hq * Dh) ** -0.5)),
        }
    _A_in = _A_setup()

    def _B_setup():
        B, S, D, F = 4, 1, 576, 4608
        return {
            "x": _w((lambda *s: torch.randn(*s, dtype=torch.bfloat16) * 0.05)(B, S, D)),
            "W_gate": _w((lambda *s: torch.randn(*s, dtype=torch.bfloat16) * 0.2)(D, F) * (2.0 / D) ** 0.5),
            "W_up": _w((lambda *s: torch.randn(*s, dtype=torch.bfloat16) * 0.2)(D, F) * (2.0 / D) ** 0.5),
            "W_down": _w((lambda *s: torch.randn(*s, dtype=torch.bfloat16) * 0.2)(F, D) * (1.0 / F) ** 0.5),
        }
    _B_in = _B_setup()

    return {
        "A_x": _A_in["x"],
        "A_k_cache": _A_in["k_cache"],
        "A_v_cache": _A_in["v_cache"],
        "A_wq": _A_in["wq"],
        "A_wo": _A_in["wo"],
        "B_x": _B_in["x"],
        "B_W_gate": _B_in["W_gate"],
        "B_W_up": _B_in["W_up"],
        "B_W_down": _B_in["W_down"],
        "gate_w": _w((lambda *s: torch.randn(*s, dtype=torch.bfloat16) * 0.05)(576) * 16.0),
    }

def reference(A_x, A_k_cache, A_v_cache, A_wq, A_wo, B_x, B_W_gate, B_W_up, B_W_down, gate_w):
    def _A_ref(x, k_cache, v_cache, wq, wo):
        B, Sq, D = x.shape
        Hq, Dh = 32, 128
        Hkv, Sk = k_cache.shape[1], k_cache.shape[2]
        W = min(4096, max(256, Sk // 4))
        rep = Hq // Hkv
        q = (lambda x, *d: x.permute(*d))((x @ wq).reshape(B, Sq, Hq, Dh), 0, 2, 1, 3)
        k = (lambda x, n, axis: torch.repeat_interleave(x, n, dim=axis))(k_cache[:, :, Sk - W:, :], rep, axis=1)
        v = (lambda x, n, axis: torch.repeat_interleave(x, n, dim=axis))(v_cache[:, :, Sk - W:, :], rep, axis=1)
        scores = torch.einsum("bhqd,bhkd->bhqk", q, k) * (Dh ** -0.5)
        p = _softmax(scores, axis=-1)
        o = torch.einsum("bhqk,bhkd->bhqd", p, v)
        return (lambda x, *d: x.permute(*d))(o, 0, 2, 1, 3).reshape(B, Sq, Hq * Dh) @ wo

    def _B_ref(x, W_gate, W_up, W_down):
        gate = torch.einsum("bsd,df->bsf", x, W_gate)
        up = torch.einsum("bsd,df->bsf", x, W_up)
        gate = gate * (lambda x, dt: x.to(dt))(gate > 0, gate.dtype)
        h = gate * up
        return torch.einsum("bsf,fd->bsd", h, W_down)

    x = A_x
    g = _sigmoid((x * gate_w).sum(-1, keepdims=True))
    a = _A_ref(x, A_k_cache, A_v_cache, A_wq, A_wo)
    b = _B_ref(x, B_W_gate, B_W_up, B_W_down)
    return g * a + (1 - g) * b
```

```python
import re

REG = re.compile(r"\b([vsa])(\d+)\b|\b([vsa])\[(\d+):(\d+)\]")


def regs(op):
    out = set()
    op = op.strip()
    if op in ("vcc", "exec", "m0", "scc"):
        return {op}
    if op in ("vcc_lo", "vcc_hi"):
        return {"vcc"}
    if op in ("exec_lo", "exec_hi"):
        return {"exec"}
    for m in REG.finditer(op):
        if m.group(1):
            out.add(m.group(1) + m.group(2))
        else:
            for i in range(int(m.group(4)), int(m.group(5)) + 1):
                out.add(m.group(3) + str(i))
    return out


TRANS = ("v_exp_f32", "v_log_f32", "v_rcp_f32", "v_rsq_f32", "v_sqrt_f32", "v_sin_f32", "v_cos_f32")


class I:
    def __init__(self, text, ln):
        self.text = text
        self.ln = ln
        t = text.split(";")[0].strip()
        self.label = None
        if t.endswith(":"):
            self.label = t[:-1]
            self.op = None
            return
        parts = t.split(None, 1)
        self.op = parts[0]
        rest = parts[1] if len(parts) > 1 else ""
        ops, depth, cur = [], 0, ""
        for ch in rest:
            if ch == "[":
                depth += 1
            if ch == "]":
                depth -= 1
            if ch == "," and depth == 0:
                ops.append(cur.strip()); cur = ""
            else:
                cur += ch
        if cur.strip():
            ops.append(cur.strip())
        self.mods = ""
        if ops:
            toks = ops[-1].split(None, 1)
            ops[-1] = toks[0]
            self.mods = toks[1] if len(toks) > 1 else ""
        self.ops = ops
        op = self.op
        self.is_mfma = op.startswith("v_mfma")
        self.is_valu = op.startswith("v_") and not self.is_mfma
        self.is_salu = op.startswith("s_")
        self.is_ds = op.startswith("ds_")
        self.is_vmem = op.startswith(("buffer_", "global_", "flat_"))
        self.is_dpp = "_dpp" in op or "row_" in self.mods or "quad_perm" in self.mods
        self.is_trans = op.replace("_e32", "").replace("_e64", "") in TRANS
        self.is_perml = op.startswith("v_permlane")
        self.is_rdlane = op.startswith(("v_readfirstlane", "v_readlane"))
        self.lds_dma = self.is_vmem and (" lds" in " " + self.mods or "load_lds" in op)
        w, r = set(), set()
        R = [regs(o) for o in ops]
        if self.is_mfma:
            w = R[0]; self.A, self.B, self.C = R[1], R[2], R[3]; r = R[1] | R[2] | R[3]
            self.passes = 8 if "32x32" in op else 4
        elif self.is_valu:
            if op.startswith("v_nop"):
                pass
            elif self.is_perml:
                w = R[0] | R[1]; r = R[0] | R[1]
            elif op.startswith(("v_add_co", "v_sub_co", "v_addc_co", "v_subb_co")):
                w = R[0] | R[1]; r = set().union(*R[2:])
            else:
                w = R[0]; r = set().union(*R[1:]) if len(R) > 1 else set()
                if op.startswith(("v_fmac", "v_dot2c")) or self.is_dpp:
                    r |= R[0]
                if op.startswith("v_cmpx"):
                    w |= {"exec"}
        elif self.is_ds:
            if op.startswith(("ds_read", "ds_bpermute", "ds_permute", "ds_swizzle")) or "_rtn" in op:
                w = R[0]; r = set().union(*R[1:])
            else:
                r = set().union(*R)
        elif self.is_vmem:
            if "load" in op and not self.lds_dma:
                w = R[0]; r = set().union(*R[1:])
            else:
                r = set().union(*R) if R else set()
            if self.lds_dma:
                r |= {"m0"}
            self.wide_store = ("store" in op and ("x3" in op or "x4" in op))
            if self.wide_store:
                self.sdata = R[0] if op.startswith("buffer") else R[1]
        elif self.is_salu:
            if op.startswith(("s_cmp", "s_bitcmp", "s_waitcnt", "s_nop", "s_barrier", "s_branch", "s_cbranch", "s_endpgm", "s_setprio", "s_sleep")):
                r = set().union(*R) if R else set()
            else:
                w = R[0] if R else set(); r = set().union(*R[1:]) if len(R) > 1 else set()
                if "saveexec" in op:
                    w |= {"exec"}
        self.w, self.r = w, r

    def states(self):
        if self.op == "s_nop":
            return int(self.ops[0], 0) + 1
        return 1


def need(p, c):
    n = 0
    vw = {x for x in p.w if x[0] in "va" and x != "vcc"}
    sw = {x for x in p.w if x[0] == "s" or x == "vcc"}
    if p.is_valu:
        if c.is_mfma and vw & c.r:
            n = max(n, 2)
        if c.is_valu and c.is_dpp and vw & c.r:
            n = max(n, 2)
        if c.is_perml and vw & c.r:
            n = max(n, 2)
        if c.is_rdlane and vw & c.r:
            n = max(n, 1)
        if p.is_trans and c.is_valu and not c.is_trans and vw & c.r:
            n = max(n, 1)
        if p.is_trans and (c.is_ds or c.is_vmem or c.is_mfma) and vw & c.r:
            n = max(n, 1)
        if sw and c.is_vmem and sw & c.r:
            n = max(n, 5)
        if sw and c.is_valu and sw & c.r:
            n = max(n, 4 if c.is_rdlane else 2)
        if "exec" in p.w and (c.is_valu and (c.is_dpp or c.is_perml or c.is_rdlane) or c.is_mfma):
            n = max(n, 5)
    if p.is_mfma:
        big = p.passes == 8
        if c.is_mfma:
            if p.w & (c.A | c.B):
                n = max(n, 12 if big else 8)
            if p.w & c.C:
                if not (p.w == c.C and p.op == c.op):
                    n = max(n, 10 if big else 6)
            elif p.w & c.w:
                n = max(n, 12 if big else 8)
        elif c.is_valu or c.is_ds or c.is_vmem:
            if p.w & (c.r | c.w):
                n = max(n, 12 if big else 8)
            if c.is_valu and p.C & c.w:
                n = max(n, 7 if big else 3)
    if p.is_salu and "m0" in p.w and c.op and (c.lds_dma if c.is_vmem else False):
        n = max(n, 1)
    if p.is_vmem and getattr(p, "wide_store", False) and (c.is_valu or c.is_mfma or c.is_ds or c.is_vmem) and p.sdata & c.w:
        n = max(n, 2)
    return n


def check(text, window=14):
    ins = []
    for ln, line in enumerate(text.splitlines(), 1):
        t = line.split(";")[0].strip()
        if not t or t.startswith("."):
            continue
        ins.append(I(t, ln))
    labels = {x.label: k for k, x in enumerate(ins) if x.label}
    probs = []

    def walk(p, k, dist, depth):
        while k < len(ins) and dist < window:
            c = ins[k]
            if c.label:
                k += 1
                continue
            n = need(p, c)
            if n > dist:
                probs.append(f"line {p.ln} '{p.text}' -> line {c.ln} '{c.text}': need {n}, have {dist}")
            if c.op == "s_endpgm":
                return
            dist += c.states()
            if c.op == "s_branch":
                if depth < 4:
                    walk(p, labels[c.ops[0]], dist, depth + 1)
                return
            if c.op.startswith("s_cbranch") and depth < 4:
                walk(p, labels[c.ops[0]], dist, depth + 1)
            k += 1

    for k, p in enumerate(ins):
        if p.label:
            continue
        if p.is_valu or p.is_mfma or p.is_vmem or (p.is_salu and "m0" in p.w):
            walk(p, k + 1, 0, 0)
    return sorted(set(probs))


if __name__ == "__main__":
    import sys
    for f in sys.argv[1:]:
        pr = check(open(f).read())
        print(f, "hazards:", len(pr))
        for x in pr:
            print("  ", x)
```

```python
import sys, json, math, struct

NAME = "gated_mix__sliding_block_cached__glu_gated_reglu__decode"
STAMP_OFF = 200 << 20

EOFF = 0
QOFF = 4096
GOFF = QOFF + 65536
OOFF = GOFF + 2 * 73728
POFF = OOFF + 16 * 16384
WS_USED = POFF + 9 * 65536

W1SZ = 18432
KOFF = 4 * W1SZ
SC = KOFF + 65536
P1PART = SC
OPART = SC + 4096
QIMG = SC + 8192
HIMG = SC + 8704
OIMG = SC + 9344
MAXT = SC + 9920
LT = SC + 9952
GT = SC + 9984
LDS_BYTES = SC + 10240

SK, SV, SW1, SX, SWO, SWD, SWS, SOUT, SGW = 8, 12, 16, 20, 24, 28, 32, 36, 40
sH, sJ, sI, sXCD, sT, sMAT, sSO, sM, sKV, sRS, sRG, sCG, sA, sB, sSTEP, sCNT = range(44, 60)
sPAIR = 60
sSelLo, sSelHi = 62, 63
sSTAMP = 64
sC0, sC1, sC2, sC3, sC4, sC5 = 96, 97, 98, 99, 100, 101

SPIN_MAX = 20000


def f2u(x):
    return struct.unpack("<I", struct.pack("<f", x))[0]


CSCALE = (128 ** -0.5) * math.log2(math.e)
LOG2E = math.log2(math.e)


def srd(r):
    return f"s[{r}:{r+3}]"


def vr(a, n):
    return f"v[{a}:{a+n-1}]" if n > 1 else f"v{a}"


class Gen:
    def __init__(self, W=8, qpos=12, nt=True, diag=False, W3=8, xflags="sc1", pf=True):
        self.o = []
        self.W, self.qpos, self.diag, self.W3 = W, qpos, diag, W3
        self.nt = " nt" if nt else ""
        self.xf = " " + xflags
        self.pf = pf
        self.q = []
        self.nst = 0

    def e(self, s):
        self.o.append(s)

    def c(self, s):
        self.o.append("; " + s)

    def issued(self, name):
        self.q.append(name)
        assert len(self.q) <= 62

    def wait_vm(self, name):
        if name in self.q:
            k = self.q.index(name)
            n = len(self.q) - 1 - k
            self.e(f"s_waitcnt vmcnt({n})")
            self.q = self.q[k + 1:]

    def nbig(self):
        return len([x for x in self.q if not x.startswith(("x", "pf"))])

    def throttle(self, W):
        big = [x for x in self.q if not x.startswith(("x", "pf"))]
        if len(big) > W - 1:
            self.wait_vm(big[len(big) - W])

    def landed(self, name):
        return name not in self.q

    def stamp(self, k):
        if self.diag:
            self.e(f"s_memrealtime s[{sSTAMP+2*k}:{sSTAMP+2*k+1}]")

    def dump_stamps(self):
        if not self.diag:
            return
        e = self.e
        e("s_waitcnt vmcnt(0) lgkmcnt(0)")
        e("s_mov_b64 exec, 1")
        e(f"s_mul_i32 s{sA}, s2, 5")
        e(f"s_add_u32 s{sA}, s{sA}, s3")
        e(f"s_lshl_b32 s{sA}, s{sA}, 6")
        e(f"s_add_u32 s{sA}, s{sA}, {STAMP_OFF}")
        e("v_mov_b32 v1, 0")
        for k in range(16):
            e(f"v_mov_b32 v{4+k}, s{sSTAMP+2*k}")
        for k in range(4):
            e(f"buffer_store_dwordx4 {vr(4+4*k,4)}, v1, {srd(SWS)}, s{sA} offen offset:{16*k}")

    def end(self):
        self.dump_stamps()
        self.e("s_endpgm")

    def header(self):
        e = self.e
        e(f"; @launch grid=(256,1,1) block=(320,1,1) lds={LDS_BYTES}")
        e('.amdgcn_target "amdgcn-amd-amdhsa--gfx950"')
        e(".text")
        e(f".globl {NAME}_kernel")
        e(".p2align 8")
        e(f".type {NAME}_kernel,@function")
        e(f"{NAME}_kernel:")

    def footer(self):
        e = self.e
        e("L_code_end:")
        e('.section .rodata,"a"')
        e(".p2align 6")
        e(f".amdhsa_kernel {NAME}_kernel")
        e("  .amdhsa_next_free_vgpr 248")
        e("  .amdhsa_next_free_sgpr 102")
        e("  .amdhsa_accum_offset 248")
        e("  .amdhsa_group_segment_fixed_size 0")
        e("  .amdhsa_kernarg_size 104")
        e("  .amdhsa_user_sgpr_count 2")
        e("  .amdhsa_user_sgpr_kernarg_segment_ptr 1")
        e("  .amdhsa_system_sgpr_workgroup_id_x 1")
        e("  .amdhsa_float_denorm_mode_32 3")
        e(".end_amdhsa_kernel")

    def prologue(self):
        e = self.e
        if self.diag:
            for k in range(1, 16):
                e(f"s_mov_b32 s{sSTAMP+2*k}, 0")
        self.stamp(0)
        e("s_cmp_ge_u32 s2, 256")
        e("s_cbranch_scc1 L_exit")
        e(f"s_load_dwordx2 s[{SK}:{SK+1}], s[0:1], 8")
        e(f"s_load_dwordx2 s[{SX}:{SX+1}], s[0:1], 0")
        if self.pf:
            self.c("pull the rest of the code into this die's L2")
            e("s_getpc_b64 s[4:5]")
            e("L_pc:")
            e("v_lshlrev_b32 v1, 7, v0")
            e("v_min_u32 v1, L_code_end-L_pc-4, v1")
            e("global_load_dword v247, v1, s[4:5]")
            self.issued("pf")
        e(f"s_lshr_b32 s{sI}, s2, 3")
        e(f"s_and_b32 s{sJ}, s{sI}, 15")
        e(f"s_lshr_b32 s{sMAT}, s{sI}, 4")
        e(f"s_lshl_b32 s{sA}, s{sMAT}, 3")
        e(f"s_add_u32 s{sA}, s{sA}, 48")
        e(f"s_cmp_lt_u32 s{sJ}, 4")
        e(f"s_cselect_b32 s{sA}, 24, s{sA}")
        e(f"s_load_dwordx2 s[{SW1}:{SW1+1}], s[0:1], s{sA}")
        e(f"s_load_dwordx2 s[{SV}:{SV+1}], s[0:1], 16")
        e(f"s_load_dwordx2 s[{SWS}:{SWS+1}], s[0:1], 96")
        e(f"s_load_dwordx2 s[{SWO}:{SWO+1}], s[0:1], 32")
        e(f"s_load_dwordx2 s[{SWD}:{SWD+1}], s[0:1], 64")
        e(f"s_load_dwordx2 s[{SGW}:{SGW+1}], s[0:1], 72")
        e(f"s_load_dwordx2 s[{SOUT}:{SOUT+1}], s[0:1], 80")
        e(f"s_movk_i32 s{sRS}, 0x2400")
        e(f"s_cselect_b32 s{sRS}, 0x2000, s{sRS}")
        e(f"s_mov_b32 s{SW1+2}, 5308416")
        e(f"s_cselect_b32 s{SW1+2}, 4718592, s{SW1+2}")
        e("v_lshrrev_b32 v1, 6, v0")
        e("v_and_b32 v0, 63, v0")
        e("v_readfirstlane_b32 s3, v1")
        e(f"s_and_b32 s{sXCD}, s2, 7")
        e(f"s_lshl_b32 s{sH}, s{sXCD}, 1")
        e(f"s_add_u32 s{sH}, s{sH}, s{sMAT}")
        for r, sz in ((SK, 67108864), (SV, 67108864), (SX, 4608), (SWO, 4718592), (SWD, 5308416),
                      (SWS, 0x10000000 if self.diag else WS_USED), (SOUT, 4608), (SGW, 1152)):
            e(f"s_mov_b32 s{r+2}, {sz}")
        for r in (SK, SV, SW1, SX, SWO, SWD, SWS, SOUT, SGW):
            e(f"s_mov_b32 s{r+3}, 0x20000")
        e(f"s_sub_u32 s{sA}, s{sJ}, 4")
        e(f"s_lshr_b32 s{sCG}, s{sA}, 2")
        e(f"s_and_b32 s{sA}, s{sA}, 3")
        e(f"s_lshl_b32 s{sRG}, s{sH}, 2")
        e(f"s_add_u32 s{sRG}, s{sRG}, s{sA}")
        e(f"s_mov_b32 s{sSelLo}, 0x05040100")
        e(f"s_mov_b32 s{sSelHi}, 0x07060302")
        e("s_cmp_eq_u32 s3, 4")
        e("s_cbranch_scc1 L_x")

    def load_tag(self):
        self.e(f"s_load_dword s{sT}, s[{SWS}:{SWS+1}], {EOFF}")

    def make_tag(self):
        self.e(f"s_mul_i32 s{sT}, s{sT}, 1664525")
        self.e(f"s_add_u32 s{sT}, s{sT}, 1013904223")

    vWe, vWo = 10, 11
    vK = 12
    vV = 16
    vT = 17
    vTag = 21
    vXo = 24
    vAcc = 44
    vSt = 60
    vQ = 92
    vMask = 108
    vO = 112
    vVd = 116
    vP = 180

    def dma(self, srdr, vo, off=0, name=None):
        o = f" offset:{off}" if off else ""
        self.e(f"buffer_load_dwordx4 v{vo}, {srd(srdr)}, s{sSO} offen{o}{self.nt} lds")
        self.issued(name)

    def lane_w_pattern(self, rs_operand):
        e = self.e
        e("v_lshrrev_b32 v1, 3, v0")
        e("v_and_b32 v2, 2, v1")
        e("v_and_b32 v3, 7, v0")
        e("v_xor_b32 v2, v2, v3")
        e("v_lshlrev_b32 v2, 4, v2")
        e(f"v_mad_u32_u24 v{self.vWe}, v1, {rs_operand}, v2")
        e(f"v_xor_b32 v{self.vWo}, 64, v{self.vWe}")

    def main_setup_kv(self):
        e = self.e
        e(f"s_lshr_b32 s{sA}, s{sJ}, 2")
        e(f"s_lshl_b32 s{sKV}, s{sA}, 24")
        e(f"s_lshl_b32 s{sA}, s{sH}, 20")
        e(f"s_add_u32 s{sKV}, s{sKV}, s{sA}")
        e(f"s_and_b32 s{sA}, s{sJ}, 3")
        e(f"s_lshl_b32 s{sA}, s{sA}, 2")
        e(f"s_add_u32 s{sA}, s{sA}, s3")
        e(f"s_lshl_b32 s{sA}, s{sA}, 14")
        e(f"s_add_u32 s{sKV}, s{sKV}, s{sA}")
        e(f"s_add_u32 s{sKV}, s{sKV}, {3072*256}")
        e("v_lshrrev_b32 v4, 4, v0")
        e("v_and_b32 v5, 15, v0")
        e("v_xor_b32 v6, v4, v5")
        e("v_lshlrev_b32 v6, 4, v6")
        e(f"v_lshl_add_u32 v{self.vK}, v4, 8, v6")
        e(f"v_xor_b32 v{self.vK+1}, 64, v{self.vK}")
        e(f"v_xor_b32 v{self.vK+2}, 0x80, v{self.vK}")
        e(f"v_xor_b32 v{self.vK+3}, 0xc0, v{self.vK}")
        e("v_lshlrev_b32 v6, 4, v5")
        e(f"v_lshl_add_u32 v{self.vV}, v4, 10, v6")

    def tr_addr(self):
        e = self.e
        e("v_lshrrev_b32 v4, 4, v0")
        e("v_bfe_u32 v5, v0, 2, 2")
        e("v_and_b32 v6, 3, v0")
        e("v_lshl_add_u32 v7, v4, 3, v5")
        e("v_lshlrev_b32 v7, 7, v7")
        e("v_lshl_add_u32 v7, v6, 3, v7")
        e(f"s_mul_i32 s{sA}, s3, {W1SZ}")
        e(f"v_add_u32 v7, s{sA}, v7")
        e("v_and_b32 v8, 1, v4")
        e("v_lshrrev_b32 v9, 1, v5")
        e("v_lshl_add_u32 v8, v8, 1, v9")
        e(f"v_lshl_add_u32 v{self.vT}, v8, 5, v7")
        e(f"v_xor_b32 v{self.vT+1}, 32, v{self.vT}")
        e(f"v_xor_b32 v{self.vT+2}, 64, v{self.vT}")
        e(f"v_xor_b32 v{self.vT+3}, 0x60, v{self.vT}")

    def k_issue_ops(self):
        ops = []
        for u in range(16):
            def f(u=u):
                e = self.e
                if u == 0:
                    e(f"s_mov_b32 s{sSO}, s{sKV}")
                    e(f"s_lshl_b32 s{sM}, s3, 14")
                    e(f"s_add_u32 s{sM}, s{sM}, {KOFF}")
                    e(f"s_mov_b32 m0, s{sM}")
                    e("s_nop 0")
                elif u % 4 == 0:
                    e(f"s_add_u32 s{sM}, s{sM}, 4096")
                    e(f"s_mov_b32 m0, s{sM}")
                    e(f"s_add_u32 s{sSO}, s{sSO}, 4096")
                self.dma(SK, self.vK + (u & 3), (u & 3) * 1024, f"K{u}")
            ops.append(f)
        return ops

    def v_issue_ops(self):
        ops = []
        for u in range(16):
            def f(u=u):
                e = self.e
                a, r = u >> 2, u & 3
                if r == 0:
                    e(f"s_add_u32 s{sB}, s{sKV}, {a*4096}")
                o = f" offset:{r*256}" if r else ""
                e(f"buffer_load_dwordx4 {vr(self.vVd+4*u,4)}, v{self.vV}, {srd(SV)}, s{sB} offen{o}{self.nt}")
                self.issued(f"V{u}")
            ops.append(f)
        return ops

    def section_A(self, with_w1):
        e = self.e
        W = self.W
        if with_w1:
            self.lane_w_pattern(f"s{sRS}")
            e(f"s_lshl_b32 s{sA}, s{sH}, 2")
            e(f"s_add_u32 s{sA}, s{sA}, s{sJ}")
            e(f"s_mul_i32 s{sB}, s{sXCD}, 9")
            e(f"s_add_u32 s{sB}, s{sB}, s{sJ}")
            e(f"s_sub_u32 s{sB}, s{sB}, 4")
            e(f"s_cmp_lt_u32 s{sJ}, 4")
            e(f"s_cselect_b32 s{sA}, s{sA}, s{sB}")
            e(f"s_lshl_b32 s{sA}, s{sA}, 7")
            e(f"s_mul_i32 s{sB}, s3, 144")
            e(f"s_mul_i32 s{sB}, s{sB}, s{sRS}")
            e(f"s_add_u32 s{sSO}, s{sA}, s{sB}")
            e(f"s_lshl_b32 s{sSTEP}, s{sRS}, 3")
            e(f"s_mul_i32 s{sM}, s3, {W1SZ}")
            e(f"s_mov_b32 m0, s{sM}")
            e("s_waitcnt lgkmcnt(0)")
            self.stamp(1)
            ops = []
            for u in range(18):
                def f(u=u):
                    if u:
                        e(f"s_add_u32 s{sM}, s{sM}, 1024")
                        e(f"s_mov_b32 m0, s{sM}")
                        e(f"s_add_u32 s{sSO}, s{sSO}, s{sSTEP}")
                    self.dma(SW1, self.vWo if u & 1 else self.vWe, 0, f"W{u}")
                ops.append(f)
            first = min(W, 18)
            for f in ops[:4]:
                f()
            e("v_and_b32 v1, 3, v0")
            e("v_mul_u32_u24 v1, 0x480, v1")
            e("v_lshrrev_b32 v4, 4, v0")
            e("v_lshl_add_u32 v2, v4, 4, v1")
            e("v_and_b32 v5, 1, v4")
            e("v_lshlrev_b32 v5, 4, v5")
            e("v_lshrrev_b32 v6, 1, v4")
            e("v_lshl_add_u32 v5, v6, 3, v5")
            e("v_add_u32 v3, v1, v5")
            e(f"s_mul_i32 s{sA}, s3, 288")
            e("s_mov_b32 exec_lo, 0x000f000f")
            e("s_mov_b32 exec_hi, 0x000f000f")
            for t in range(4):
                o = f" offset:{64*t}" if t else ""
                e(f"buffer_load_dwordx4 {vr(self.vXo+4*t,4)}, v2, {srd(SX)}, s{sA} offen{o}")
                self.issued(f"x{t}")
            e(f"buffer_load_dwordx2 {vr(self.vXo+16,2)}, v3, {srd(SX)}, s{sA} offen offset:256")
            self.issued("x4")
            e("s_mov_b64 exec, -1")
            for f in ops[4:first]:
                f()
            ops = ops[first:]
            self.load_tag()
            self.main_setup_kv()
            self.tr_addr()
            ops += self.k_issue_ops() + self.v_issue_ops()[:self.qpos]
            done_steps = 0
            waited_tag = False

            def p1_step(t):
                nonlocal waited_tag
                if not waited_tag:
                    e("s_waitcnt lgkmcnt(0)")
                    self.make_tag()
                    waited_tag = True
                self.wait_vm("x4")
                st = self.vSt + 16 * (t & 1)
                if t < 4:
                    for ct in range(4):
                        for z in range(2):
                            e(f"ds_read_b64_tr_b16 {vr(st+4*ct+2*z,2)}, v{self.vT+ct} offset:{(32*t+4*z)*128}")
                    for ct in range(4):
                        e(f"s_waitcnt lgkmcnt({6-2*ct})")
                        cin = vr(self.vAcc + 4 * ct, 4) if t else "0"
                        e(f"v_mfma_f32_16x16x32_bf16 {vr(self.vAcc+4*ct,4)}, {vr(st+4*ct,4)}, {vr(self.vXo+4*t,4)}, {cin}")
                else:
                    e("v_lshrrev_b32 v4, 4, v0")
                    e("v_and_b32 v5, 1, v4")
                    e("v_lshrrev_b32 v6, 1, v4")
                    e("v_sub_u32 v5, v5, v4")
                    e("v_lshlrev_b32 v5, 10, v5")
                    e("v_lshl_add_u32 v5, v6, 9, v5")
                    for ct in range(4):
                        e(f"v_add_u32 v{1+ct}, v5, v{self.vT+ct}")
                    for ct in range(4):
                        e(f"ds_read_b64_tr_b16 {vr(st+2*ct,2)}, v{1+ct} offset:{128*128}")
                    for ct in range(4):
                        e(f"s_waitcnt lgkmcnt({3-ct})")
                        e(f"v_mfma_f32_16x16x16_bf16 {vr(self.vAcc+4*ct,4)}, {vr(st+2*ct,2)}, {vr(self.vXo+16,2)}, {vr(self.vAcc+4*ct,4)}")
                    e("v_and_b32 v1, 3, v0")
                    e("v_lshlrev_b32 v1, 8, v1")
                    e("v_lshrrev_b32 v4, 4, v0")
                    e("v_lshl_add_u32 v1, v4, 4, v1")
                    e(f"s_lshl_b32 s{sA}, s3, 10")
                    e(f"s_add_u32 s{sA}, s{sA}, {P1PART}")
                    e(f"v_add_u32 v1, s{sA}, v1")
                    e("s_mov_b32 exec_lo, 0x000f000f")
                    e("s_mov_b32 exec_hi, 0x000f000f")
                    for ct in range(4):
                        e(f"ds_write_b128 v1, {vr(self.vAcc+4*ct,4)} offset:{64*ct}")
                    e("s_mov_b64 exec, -1")
                    e("s_waitcnt lgkmcnt(0)")
                    self.stamp(2)
                    e("s_barrier")

            def step_ready(t):
                last = 4 * t + 3 if t < 4 else 17
                return f"W{last}" in issued_names and self.landed(f"W{last}")

            issued_names = set(f"W{u}" for u in range(first))
            nW = first
            for f in ops:
                self.throttle(W)
                f()
                if nW < 18:
                    issued_names.add(f"W{nW}")
                    nW += 1
                while done_steps < 5 and step_ready(done_steps):
                    p1_step(done_steps)
                    done_steps += 1
            while done_steps < 5:
                last = 4 * done_steps + 3 if done_steps < 4 else 17
                self.wait_vm(f"W{last}")
                p1_step(done_steps)
                done_steps += 1
        else:
            self.main_setup_kv()
            e("s_waitcnt lgkmcnt(0)")
            self.stamp(1)
            ops = self.k_issue_ops() + self.v_issue_ops()[:self.qpos]
            for n, f in enumerate(ops):
                self.throttle(W)
                f()
                if n == min(W, 16) - 1:
                    self.load_tag()
                    self.tr_addr()
            e("s_waitcnt lgkmcnt(0)")
            self.make_tag()
        self.wait_vm("K15")
        assert self.q == [f"V{u}" for u in range(self.qpos)][len(range(self.qpos)) - len(self.q):], self.q

    def section_B(self):
        e = self.e
        vK, vS, vQ, vMask = self.vK, self.vAcc, self.vQ, self.vMask
        vops = self.v_issue_ops()[self.qpos:]
        e("v_and_b32 v5, 15, v0")
        e("v_lshrrev_b32 v4, 4, v0")
        e("v_xor_b32 v6, v4, v5")
        e("v_lshlrev_b32 v6, 4, v6")
        e("v_lshl_add_u32 v6, v5, 8, v6")
        e(f"s_lshl_b32 s{sA}, s3, 14")
        e(f"s_add_u32 s{sA}, s{sA}, {KOFF}")
        e(f"v_add_u32 v{vK}, s{sA}, v6")
        e(f"v_xor_b32 v{vK+1}, 64, v{vK}")
        e(f"v_xor_b32 v{vK+2}, 0x80, v{vK}")
        e(f"v_xor_b32 v{vK+3}, 0xc0, v{vK}")
        e("v_lshrrev_b32 v7, 3, v5")
        e("v_lshlrev_b32 v8, 8, v7")
        e("v_lshl_add_u32 v8, v4, 4, v8")
        e(f"v_add_u32 v8, {QIMG}, v8")
        e("v_lshlrev_b32 v9, 4, v7")
        e(f"v_add_u32 v9, {MAXT}, v9")
        e(f"s_lshl_b32 s{sA}, s3, 2")
        e(f"v_add_u32 v7, s{sA}, v9")
        e("v_and_b32 v1, 1, v0")
        e("v_lshlrev_b32 v1, 4, v1")
        e("v_mov_b32 v2, 0xffff")
        e("v_lshlrev_b32 v1, v1, v2")
        e("v_bfe_u32 v2, v0, 1, 2")
        for qd in range(4):
            e(f"v_cmp_eq_u32 vcc, {qd}, v2")
            e("s_nop 1")
            e(f"v_cndmask_b32 v{vMask+qd}, 0, v1, vcc")
        def kread(a):
            for t in range(4):
                e(f"ds_read_b128 {vr(self.vSt+16*(a&1)+4*t,4)}, v{vK+t} offset:{a*4096}")
        kread(0)
        kread(1)
        self.stamp(3)
        e("s_barrier")
        self.stamp(4)
        for t in range(4):
            e(f"ds_read_b128 {vr(vQ+4*t,4)}, v8 offset:{64*t}")
        e("s_waitcnt lgkmcnt(0)")
        def qk(a):
            for t in range(4):
                cin = vr(vS + 4 * a, 4) if t else "0"
                e(f"v_mfma_f32_16x16x32_bf16 {vr(vS+4*a,4)}, {vr(self.vSt+16*(a&1)+4*t,4)}, {vr(vQ+4*t,4)}, {cin}")
        qk(0)
        kread(2)
        qk(1)
        kread(3)
        n_early = (len(vops) + 1) // 2
        for f in vops[:n_early]:
            f()
        e("s_waitcnt lgkmcnt(4)")
        qk(2)
        e("s_waitcnt lgkmcnt(0)")
        qk(3)
        e(f"v_max3_f32 v1, v{vS}, v{vS+1}, v{vS+2}")
        e(f"v_max3_f32 v1, v1, v{vS+3}, v{vS+4}")
        e(f"v_max3_f32 v1, v1, v{vS+5}, v{vS+6}")
        e(f"v_max_f32 v1, v1, v{vS+7}")
        e(f"v_max3_f32 v2, v{vS+8}, v{vS+9}, v{vS+10}")
        e(f"v_max_f32 v2, v2, v{vS+11}")
        e("s_nop 2")
        e(f"v_max3_f32 v1, v1, v{vS+12}, v{vS+13}")
        e(f"v_max3_f32 v2, v2, v{vS+14}, v{vS+15}")
        e("v_max_f32 v1, v1, v2")
        e("v_mov_b32 v2, v1")
        e("s_nop 1")
        e("v_permlane32_swap_b32 v1, v2")
        e("v_max_f32 v1, v1, v2")
        e("v_mov_b32 v2, v1")
        e("s_nop 1")
        e("v_permlane16_swap_b32 v1, v2")
        e("v_max_f32 v1, v1, v2")
        e("s_mov_b64 exec, 0x101")
        e("ds_write_b32 v7, v1")
        e("s_mov_b64 exec, -1")
        e("s_waitcnt lgkmcnt(0)")
        e("s_barrier")
        e(f"ds_read_b128 v[2:5], v9")
        for f in vops[n_early:]:
            f()
        e(f"s_mov_b32 s{sA}, {hex(f2u(CSCALE))}")
        e("s_waitcnt lgkmcnt(0)")
        e("v_max3_f32 v1, v2, v3, v4")
        e("v_max_f32 v1, v1, v5")
        e(f"v_mul_f32 v1, s{sA}, v1")
        for k in range(16):
            e(f"v_fma_f32 v{vS+k}, v{vS+k}, s{sA}, -v1")
        for k in range(16):
            e(f"v_exp_f32 v{vS+k}, v{vS+k}")
        for k in range(16):
            e(f"v_cvt_pk_bf16_f32 v2, v{vS+k}, v{vS+k}")
            for qd in range(4):
                e(f"v_and_b32 v{self.vP+4*k+qd}, v2, v{vMask+qd}")
        e(f"v_add_f32 v1, v{vS}, v{vS+1}")
        e(f"v_add_f32 v2, v{vS+2}, v{vS+3}")
        for k in range(4, 16, 2):
            e(f"v_add_f32 v1, v1, v{vS+k}")
            e(f"v_add_f32 v2, v2, v{vS+k+1}")
        e("v_add_f32 v1, v1, v2")
        e("v_mov_b32 v2, v1")
        e("s_nop 1")
        e("v_permlane32_swap_b32 v1, v2")
        e("v_add_f32 v1, v1, v2")
        e("v_mov_b32 v2, v1")
        e("s_nop 1")
        e("v_permlane16_swap_b32 v1, v2")
        e("v_add_f32 v1, v1, v2")
        e("s_mov_b64 exec, 0x101")
        e(f"ds_write_b32 v7, v1 offset:{LT-MAXT}")
        e("s_mov_b64 exec, -1")
        e("v_lshrrev_b32 v4, 4, v0")
        e("v_and_b32 v5, 15, v0")
        e("v_lshrrev_b32 v6, 1, v4")
        e("v_and_b32 v4, 1, v4")
        e("v_lshlrev_b32 v6, 9, v6")
        e("v_lshl_add_u32 v6, v5, 5, v6")
        e("v_lshl_add_u32 v6, v4, 4, v6")
        e(f"s_lshl_b32 s{sA}, s3, 10")
        e(f"s_add_u32 s{sA}, s{sA}, {OPART}")
        e(f"v_add_u32 v9, s{sA}, v6")
        self.stamp(5)

    def p3_issue_ops(self):
        e = self.e
        ops = []
        order = [("d", u) for u in range(9)] + [("o", u) for u in range(8)]
        for kind, u in order:
            def f(kind=kind, u=u):
                if u == 0:
                    rows = 72 if kind == "d" else 64
                    e(f"s_mul_i32 s{sSO}, s{sRG}, {rows*1152}")
                    e(f"s_add_u32 s{sSO}, s{sSO}, s{sSTEP}")
                    e(f"s_mul_i32 s{sM}, s3, {W1SZ}")
                    if kind == "d":
                        e(f"s_add_u32 s{sM}, s{sM}, 8192")
                    e(f"s_mov_b32 m0, s{sM}")
                    e("s_nop 0")
                else:
                    e(f"s_add_u32 s{sM}, s{sM}, 1024")
                    e(f"s_mov_b32 m0, s{sM}")
                    e(f"s_add_u32 s{sSO}, s{sSO}, {8*1152}")
                self.dma(SWD if kind == "d" else SWO, self.vWo if u & 1 else self.vWe, 0, f"{kind}{u}")
            ops.append(f)
        return ops

    def section_C(self, with_p3):
        e = self.e
        ops = []
        if with_p3:
            e(f"s_movk_i32 s{sA}, 0x480")
            self.lane_w_pattern(f"s{sA}")
            e(f"s_mul_i32 s{sSTEP}, s{sCG}, 3")
            e(f"s_add_u32 s{sSTEP}, s{sSTEP}, s3")
            e(f"s_lshl_b32 s{sSTEP}, s{sSTEP}, 7")
            ops = self.p3_issue_ops()
        for u in range(16):
            while ops and self.nbig() < self.W3:
                ops.pop(0)()
            self.wait_vm(f"V{u}")
            cin = vr(self.vO, 4) if u else "0"
            e(f"v_mfma_f32_16x16x32_bf16 {vr(self.vO,4)}, {vr(self.vP+4*u,4)}, {vr(self.vVd+4*u,4)}, {cin}")
        self.stamp(6)
        e("s_nop 7")
        e(f"ds_write_b128 v9, {vr(self.vO,4)}")
        e("s_waitcnt lgkmcnt(0)")
        e("s_barrier")
        for f in ops:
            self.throttle(self.W3)
            f()

    def section_D1(self):
        e = self.e
        vT, acc = self.vT, self.vAcc
        e("v_and_b32 v1, 3, v0")
        e("v_lshrrev_b32 v4, 4, v0")
        e("v_mul_u32_u24 v2, 0xa0, v1")
        e("v_lshl_add_u32 v3, v4, 4, v2")
        e(f"v_add_u32 v3, {HIMG}, v3")
        e("v_lshrrev_b32 v6, 1, v4")
        e("v_and_b32 v5, 1, v4")
        e("v_sub_u32 v7, 1, v5")
        e("v_mul_u32_u24 v7, v7, v6")
        e("v_lshlrev_b32 v7, 3, v7")
        e("v_lshl_add_u32 v7, v5, 4, v7")
        e("v_add_u32 v7, v7, v2")
        e(f"v_add_u32 v7, {HIMG+128}, v7")
        e("v_lshlrev_b32 v8, 2, v1")
        e(f"v_add_u32 v8, {GT}, v8")
        e(f"ds_read_b128 {vr(self.vQ,4)}, v3")
        e(f"ds_read_b128 {vr(self.vQ+4,4)}, v3 offset:64")
        e(f"ds_read_b64 {vr(self.vQ+8,2)}, v7")
        e(f"ds_read_b32 v{self.vQ+10}, v8 offset:16")
        e("v_mul_u32_u24 v2, 0x90, v1")
        e("v_lshl_add_u32 v9, v4, 4, v2")
        e(f"v_add_u32 v9, {OIMG}, v9")
        e("v_lshlrev_b32 v5, 10, v4")
        e("v_lshlrev_b32 v6, 9, v6")
        e("v_sub_u32 v5, v6, v5")
        for ct in range(4):
            e(f"v_add_u32 v{self.vK+ct}, v5, v{vT+ct}")
        e(f"v_mov_b32 v{self.vTag}, s{sT}")
        e("v_lshlrev_b32 v8, 4, v0")
        e(f"s_lshl_b32 s{sB}, s{sSTEP}, 9")
        e(f"s_lshl_b32 s{sA}, s{sRG}, 10")
        e(f"s_add_u32 s{sB}, s{sB}, s{sA}")
        e(f"s_add_u32 s{sB}, s{sB}, {POFF}")
        for r in range(4):
            e(f"s_mov_b32 s{sC0+r}, {hex(0x07060500+r)}")
        D = self.vVd
        for t in range(2):
            self.wait_vm(f"d{4*t+3}")
            for ct in range(4):
                for z in range(2):
                    e(f"ds_read_b64_tr_b16 {vr(D+16*t+4*ct+2*z,2)}, v{vT+ct} offset:{(64+32*t+4*z)*128}")
            for ct in range(4):
                e(f"s_waitcnt lgkmcnt({6-2*ct})")
                cin = vr(acc + 4 * ct, 4) if t else "0"
                e(f"v_mfma_f32_16x16x32_bf16 {vr(acc+4*ct,4)}, {vr(D+16*t+4*ct,4)}, {vr(self.vQ+4*t,4)}, {cin}")
        self.wait_vm("d8")
        for ct in range(4):
            e(f"ds_read_b64_tr_b16 {vr(D+32+2*ct,2)}, v{self.vK+ct} offset:{128*128}")
        for ct in range(4):
            e(f"s_waitcnt lgkmcnt({3-ct})")
            e(f"v_mfma_f32_16x16x16_bf16 {vr(acc+4*ct,4)}, {vr(D+32+2*ct,2)}, {vr(self.vQ+8,2)}, {vr(acc+4*ct,4)}")
        self.stamp(7)
        P = self.vP
        self.wait_vm("o3")
        for ct in range(4):
            for z in range(2):
                e(f"ds_read_b64_tr_b16 {vr(P+4*ct+2*z,2)}, v{vT+ct} offset:{(4*z)*128}")
        for k in range(16):
            e(f"v_mul_f32 v{acc+k}, v{self.vQ+10}, v{acc+k}")
        self.wait_vm("o7")
        for ct in range(4):
            for z in range(2):
                e(f"ds_read_b64_tr_b16 {vr(P+16+4*ct+2*z,2)}, v{vT+ct} offset:{(32+4*z)*128}")
        self.stamp(8)
        e("s_barrier")
        self.stamp(9)
        e(f"ds_read_b128 {vr(self.vQ,4)}, v9")
        e(f"ds_read_b128 {vr(self.vQ+4,4)}, v9 offset:64")
        for t in range(2):
            e(f"s_waitcnt lgkmcnt({1-t})")
            for ct in range(4):
                e(f"v_mfma_f32_16x16x32_bf16 {vr(acc+4*ct,4)}, {vr(P+16*t+4*ct,4)}, {vr(self.vQ+4*t,4)}, {vr(acc+4*ct,4)}")
        e("s_nop 5")
        for ct in range(1, 4):
            for r in range(4):
                e(f"v_mov_b32_dpp v{acc+r}, v{acc+4*ct+r} quad_perm:[0,1,2,3] row_mask:0xf bank_mask:{hex(1<<ct)}")
        for r in range(4):
            e(f"v_perm_b32 v{4+r}, v{acc+r}, v{self.vTag}, s{sC0+r}")
        e(f"buffer_store_dwordx4 v[4:7], v8, {srd(SWS)}, s{sB} offen{self.xf}")
        self.stamp(10)
        self.end()

    def poll_head(self, lab):
        self.e(f"s_mov_b32 s{sCNT}, 0")
        self.e(f"{lab}:")

    def poll_tail(self, lab, vbad):
        e = self.e
        e(f"v_cmp_ne_u32 vcc, 0, v{vbad}")
        e(f"s_add_u32 s{sCNT}, s{sCNT}, 1")
        e(f"s_cmp_gt_u32 s{sCNT}, {SPIN_MAX}")
        e(f"s_cbranch_scc1 {lab}_out")
        e(f"s_cbranch_vccnz {lab}")
        e(f"{lab}_out:")

    def section_D2(self):
        e = self.e
        e("v_lshlrev_b32 v1, 4, v0")
        e(f"s_lshl_b32 s{sB}, s{sRG}, 12")
        e(f"s_add_u32 s{sB}, s{sB}, {OOFF}")
        e("v_lshrrev_b32 v4, 4, v0")
        e("v_and_b32 v5, 15, v0")
        e("v_mul_u32_u24 v2, 0x90, v4")
        e("v_lshl_add_u32 v2, v5, 3, v2")
        e(f"v_add_u32 v2, {OIMG}, v2")
        e("v_lshlrev_b32 v3, 2, v4")
        e(f"v_add_u32 v3, {GT}, v3")
        e("ds_read_b32 v3, v3")
        e(f"v_mov_b32 v{self.vTag}, s{sT}")
        e(f"s_mov_b32 s{sC0}, 0xffff0000")
        D = self.vVd
        self.poll_head("L_po")
        for s in range(4):
            o = f" offset:{1024*s}" if s else ""
            e(f"buffer_load_dwordx4 {vr(D+4*s,4)}, v1, {srd(SWS)}, s{sB} offen{o}{self.xf}")
        for s in range(4):
            e(f"s_waitcnt vmcnt({3-s})")
            e(f"v_perm_b32 v{4+s}, v{D+4*s+1}, v{D+4*s}, s{sSelLo}")
            e(f"v_xor_b32 v{4+s}, v{4+s}, v{self.vTag}")
            e(f"v_perm_b32 v{24+s}, v{D+4*s+3}, v{D+4*s+2}, s{sSelLo}")
        e("v_or3_b32 v4, v4, v5, v6")
        e("v_or_b32 v4, v4, v7")
        self.poll_tail("L_po", 4)
        self.stamp(8)
        e("v_max3_f32 v4, v24, v25, v26")
        e("v_max_f32 v4, v4, v27")
        for s in range(4):
            e(f"v_sub_f32 v{24+s}, v{24+s}, v4")
        for s in range(4):
            e(f"v_exp_f32 v{24+s}, v{24+s}")
        for k in range(4):
            e(f"v_and_b32 v{D+k}, s{sC0}, v{D+k}")
        e("v_add_f32 v4, v24, v25")
        e("v_add_f32 v5, v26, v27")
        e("v_add_f32 v4, v4, v5")
        e("v_rcp_f32 v4, v4")
        for k in range(4, 16):
            e(f"v_and_b32 v{D+k}, s{sC0}, v{D+k}")
        for k in range(4):
            e(f"v_mul_f32 v{28+k}, v24, v{D+k}")
        for s in range(1, 4):
            for k in range(4):
                e(f"v_fmac_f32 v{28+k}, v{24+s}, v{D+4*s+k}")
        e("s_waitcnt lgkmcnt(0)")
        e("v_mul_f32 v4, v4, v3")
        for k in range(4):
            e(f"v_mul_f32 v{28+k}, v4, v{28+k}")
        e("v_cvt_pk_bf16_f32 v6, v28, v29")
        e("v_cvt_pk_bf16_f32 v7, v30, v31")
        e("ds_write_b64 v2, v[6:7]")
        e("s_waitcnt lgkmcnt(0)")
        self.stamp(9)
        e("s_barrier")
        self.end()

    def section_D3(self):
        e = self.e
        e(f"s_lshl_b32 s{sA}, s3, 2")
        e(f"s_add_u32 s{sA}, s{sA}, s{sJ}")
        e(f"s_cmp_gt_u32 s{sA}, 8")
        e("s_cbranch_scc1 L_fin")
        e(f"s_mul_i32 s{sB}, s{sH}, 9")
        e(f"s_add_u32 s{sA}, s{sA}, s{sB}")
        e(f"s_lshr_b32 s{sCG}, s{sA}, 4")
        e(f"s_and_b32 s{sRG}, s{sA}, 15")
        e(f"s_lshl_b32 s{sB}, s{sCG}, 16")
        e(f"s_lshl_b32 s{sSO}, s{sRG}, 6")
        e(f"s_add_u32 s{sB}, s{sB}, s{sSO}")
        e(f"s_add_u32 s{sB}, s{sB}, {POFF}")
        for u in range(1, 4):
            e(f"s_add_u32 s{sC0+u}, s{sB}, {16384*u}")
        e(f"s_mov_b32 s{sC0}, s{sB}")
        e("v_lshrrev_b32 v1, 2, v0")
        e("v_and_b32 v2, 3, v0")
        e("v_lshlrev_b32 v1, 10, v1")
        e("v_lshl_add_u32 v1, v2, 4, v1")
        e("v_mul_u32_u24 v2, 0x480, v2")
        e(f"s_and_b32 s{sSO}, s{sRG}, 3")
        e(f"s_lshl_b32 s{sSO}, s{sSO}, 5")
        e(f"s_lshr_b32 s{sM}, s{sRG}, 2")
        e(f"s_lshl_b32 s{sM}, s{sM}, 3")
        e(f"s_add_u32 s{sSO}, s{sSO}, s{sM}")
        e(f"s_lshl_b32 s{sM}, s{sCG}, 7")
        e(f"s_add_u32 s{sSO}, s{sSO}, s{sM}")
        e(f"v_mov_b32 v{self.vTag}, s{sT}")
        e(f"s_mov_b32 s{sC4}, 0x0c0c0400")
        e(f"s_mov_b32 s{sC5}, 0x04000c0c")
        e(f"s_mov_b32 s{sM}, 0xffffff00")
        D = self.vVd
        self.poll_head("L_pr")
        for u in range(4):
            e(f"buffer_load_dwordx4 {vr(D+4*u,4)}, v1, {srd(SWS)}, s{sC0+u} offen{self.xf}")
        for u in range(4):
            e(f"s_waitcnt vmcnt({3-u})")
            e(f"v_perm_b32 v{4+u}, v{D+4*u+1}, v{D+4*u}, s{sC4}")
            e(f"v_perm_b32 v8, v{D+4*u+3}, v{D+4*u+2}, s{sC5}")
            e(f"v_or_b32 v{4+u}, v{4+u}, v8")
            e(f"v_xor_b32 v{4+u}, v{4+u}, v{self.vTag}")
        e("v_or3_b32 v4, v4, v5, v6")
        e("v_or_b32 v4, v4, v7")
        self.poll_tail("L_pr", 4)
        self.stamp(8)
        for k in range(16):
            e(f"v_and_b32 v{D+k}, s{sM}, v{D+k}")
        for k in range(4):
            e(f"v_add_f32 v{D+k}, v{D+k}, v{D+4+k}")
            e(f"v_add_f32 v{D+8+k}, v{D+8+k}, v{D+12+k}")
        for k in range(4):
            e(f"v_add_f32 v{D+k}, v{D+k}, v{D+8+k}")
        for rot in (4, 8):
            for k in range(4):
                e(f"v_add_f32_dpp v{D+k}, v{D+k}, v{D+k} row_ror:{rot} row_mask:0xf bank_mask:0xf")
        for sw in ("16", "32"):
            for k in range(4):
                e(f"v_mov_b32 v{D+4+k}, v{D+k}")
            for k in range(4):
                e(f"v_permlane{sw}_swap_b32 v{D+k}, v{D+4+k}")
            for k in range(4):
                e(f"v_add_f32 v{D+k}, v{D+k}, v{D+4+k}")
        e(f"v_cvt_pk_bf16_f32 v4, v{D}, v{D+1}")
        e(f"v_cvt_pk_bf16_f32 v5, v{D+2}, v{D+3}")
        e("s_mov_b64 exec, 15")
        e(f"buffer_store_dwordx2 v[4:5], v2, {srd(SOUT)}, s{sSO} offen")
        e(f"s_cmp_lg_u32 s{sA}, 0")
        e("s_cbranch_scc1 L_fin")
        self.c("the hand-off tag of this launch becomes the seed of the next one")
        e("s_mov_b64 exec, 1")
        e("v_mov_b32 v1, 0")
        e(f"buffer_store_dword v{self.vTag}, v1, {srd(SWS)}, 0 offen offset:{EOFF}")
        e("L_fin:")
        self.stamp(9)
        self.end()

    def xwave(self):
        e = self.e
        vTag = 3
        e("L_x:")
        e("s_setprio 2")
        e("v_lshrrev_b32 v4, 4, v0")
        e("v_and_b32 v5, 15, v0")
        e("v_lshlrev_b32 v6, 3, v5")
        e("v_mul_u32_u24 v7, 0x480, v4")
        e("v_add_u32 v7, v7, v6")
        e("s_waitcnt lgkmcnt(0)")
        self.stamp(1)
        self.load_tag()
        e(f"s_mov_b32 s{sC0}, 0xffff0000")
        e(f"s_cmp_lt_u32 s{sJ}, 4")
        e("s_cbranch_scc1 L_x_nog")
        for u in range(9):
            o = f" offset:{128*u}" if u else ""
            e(f"buffer_load_dwordx2 {vr(20+2*u,2)}, v7, {srd(SX)}, 0 offen{o}")
            e(f"buffer_load_dwordx2 {vr(40+2*u,2)}, v6, {srd(SGW)}, 0 offen{o}")
        e("v_mov_b32 v8, 0")
        e("v_mov_b32 v9, 0")
        e("v_mul_u32_u24 v10, 0xa0, v4")
        e("v_and_b32 v11, 1, v5")
        e("v_lshl_add_u32 v11, v11, 3, v10")
        e(f"v_add_u32 v11, {HIMG+144}, v11")
        e("ds_write_b64 v11, v[8:9]")
        for k in range(18):
            if k % 2 == 0:
                e(f"s_waitcnt vmcnt({16-k})")
            e(f"v_lshlrev_b32 v12, 16, v{20+k}")
            e(f"v_and_b32 v13, s{sC0}, v{20+k}")
            e(f"v_lshlrev_b32 v14, 16, v{40+k}")
            e(f"v_and_b32 v15, s{sC0}, v{40+k}")
            e("v_pk_mul_f32 v[12:13], v[12:13], v[14:15]")
            e("v_cvt_pk_bf16_f32 v13, v12, v13")
            e("v_lshlrev_b32 v12, 16, v13")
            e(f"v_and_b32 v13, s{sC0}, v13")
            e("v_pk_add_f32 v[8:9], v[8:9], v[12:13]")
        e("v_add_f32 v8, v8, v9")
        for rot in (8, 4, 2, 1):
            e("s_nop 1")
            e(f"v_add_f32_dpp v8, v8, v8 row_ror:{rot} row_mask:0xf bank_mask:0xf")
        e("v_cvt_pk_bf16_f32 v8, v8, v8")
        e(f"v_and_b32 v8, s{sC0}, v8")
        e(f"v_mul_f32 v8, {hex(f2u(-LOG2E))}, v8")
        e("v_exp_f32 v8, v8")
        e("s_nop 0")
        e("v_add_f32 v8, 1.0, v8")
        e("v_rcp_f32 v8, v8")
        e("s_nop 0")
        e("v_cvt_pk_bf16_f32 v8, v8, v8")
        e(f"v_and_b32 v8, s{sC0}, v8")
        e("v_sub_f32 v9, 1.0, v8")
        e("v_cvt_pk_bf16_f32 v9, v9, v9")
        e(f"v_and_b32 v9, s{sC0}, v9")
        e("v_lshlrev_b32 v11, 2, v4")
        e(f"v_add_u32 v11, {GT}, v11")
        e("ds_write2_b32 v11, v8, v9 offset0:0 offset1:4")
        e("L_x_nog:")
        e("s_waitcnt lgkmcnt(0)")
        self.make_tag()
        e(f"v_mov_b32 v{vTag}, s{sT}")
        e("v_lshlrev_b32 v1, 4, v0")
        e(f"s_cmp_ge_u32 s{sJ}, 13")
        e("s_cbranch_scc1 L_x_nop1")
        e(f"v_add_u32 v2, {P1PART}, v1")
        e(f"s_lshl_b32 s{sA}, s{sH}, 2")
        e(f"s_add_u32 s{sA}, s{sA}, s{sJ}")
        e(f"s_lshl_b32 s{sA}, s{sA}, 10")
        e(f"s_add_u32 s{sA}, s{sA}, {QOFF}")
        e(f"s_mul_i32 s{sB}, s{sXCD}, 9")
        e(f"s_add_u32 s{sB}, s{sB}, s{sJ}")
        e(f"s_lshl_b32 s{sB}, s{sB}, 8")
        e(f"s_mul_i32 s{sSO}, s{sMAT}, 73728")
        e(f"s_add_u32 s{sB}, s{sB}, s{sSO}")
        e(f"s_add_u32 s{sB}, s{sB}, {GOFF-4*256}")
        e(f"s_movk_i32 s{sM}, 0x4800")
        e(f"s_cmp_lt_u32 s{sJ}, 4")
        e(f"s_cselect_b32 s{sSO}, s{sA}, s{sB}")
        e(f"s_cselect_b32 s{sM}, 0x100, s{sM}")
        e("v_lshlrev_b32 v8, 4, v5")
        e(f"v_mad_u32_u24 v8, v4, s{sM}, v8")
        self.stamp(2)
        e("s_barrier")
        for w in range(4):
            e(f"ds_read_b128 {vr(20+4*w,4)}, v2 offset:{1024*w}")
        e("s_waitcnt lgkmcnt(2)")
        e("v_pk_add_f32 v[20:21], v[20:21], v[24:25]")
        e("v_pk_add_f32 v[22:23], v[22:23], v[26:27]")
        e("s_waitcnt lgkmcnt(0)")
        e("v_pk_add_f32 v[28:29], v[28:29], v[32:33]")
        e("v_pk_add_f32 v[30:31], v[30:31], v[34:35]")
        e("v_pk_add_f32 v[20:21], v[20:21], v[28:29]")
        e("v_pk_add_f32 v[22:23], v[22:23], v[30:31]")
        e("v_cvt_pk_bf16_f32 v20, v20, v21")
        e("v_cvt_pk_bf16_f32 v22, v22, v23")
        e(f"v_perm_b32 v12, v20, v{vTag}, s{sSelLo}")
        e(f"v_perm_b32 v13, v20, v{vTag}, s{sSelHi}")
        e(f"v_perm_b32 v14, v22, v{vTag}, s{sSelLo}")
        e(f"v_perm_b32 v15, v22, v{vTag}, s{sSelHi}")
        e(f"buffer_store_dwordx4 v[12:15], v8, {srd(SWS)}, s{sSO} offen{self.xf}")
        self.stamp(3)
        e("L_x_nop1:")
        e("v_lshlrev_b32 v8, 10, v4")
        e("v_lshl_add_u32 v8, v5, 4, v8")
        e(f"s_lshl_b32 s{sA}, s{sH}, 12")
        e(f"s_lshr_b32 s{sB}, s{sJ}, 2")
        e(f"s_lshl_b32 s{sB}, s{sB}, 8")
        e(f"s_add_u32 s{sA}, s{sA}, s{sB}")
        e(f"s_add_u32 s{sA}, s{sA}, {QOFF}")
        e("v_lshlrev_b32 v2, 3, v0")
        e(f"v_add_u32 v2, {QIMG}, v2")
        e(f"s_cmp_lt_u32 s{sJ}, 4")
        e("s_cbranch_scc1 L_x_qonly")
        e("v_mul_u32_u24 v9, 0x4800, v4")
        e("v_and_b32 v11, 1, v5")
        e("v_lshl_add_u32 v10, v11, 4, v9")
        e("v_lshl_add_u32 v9, v5, 4, v9")
        e(f"s_mul_i32 s{sB}, s{sRG}, 288")
        e(f"s_add_u32 s{sB}, s{sB}, {GOFF}")
        e(f"s_add_u32 s{sSO}, s{sB}, 73728")
        self.poll_head("L_pg")
        e(f"buffer_load_dwordx4 v[20:23], v8, {srd(SWS)}, s{sA} offen{self.xf}")
        e(f"buffer_load_dwordx4 v[24:27], v9, {srd(SWS)}, s{sB} offen{self.xf}")
        e(f"buffer_load_dwordx4 v[28:31], v9, {srd(SWS)}, s{sSO} offen{self.xf}")
        e(f"buffer_load_dwordx4 v[32:35], v10, {srd(SWS)}, s{sB} offen offset:256{self.xf}")
        e(f"buffer_load_dwordx4 v[36:39], v10, {srd(SWS)}, s{sSO} offen offset:256{self.xf}")
        for u in range(5):
            e(f"s_waitcnt vmcnt({4-u})")
            e(f"v_perm_b32 v{12+u}, v{21+4*u}, v{20+4*u}, s{sSelLo}")
            e(f"v_xor_b32 v{12+u}, v{12+u}, v{vTag}")
        e("v_or3_b32 v12, v12, v13, v14")
        e("v_or3_b32 v12, v12, v15, v16")
        self.poll_tail("L_pg", 12)
        e(f"v_perm_b32 v12, v21, v20, s{sSelHi}")
        e(f"v_perm_b32 v13, v23, v22, s{sSelHi}")
        e("ds_write_b64 v2, v[12:13]")
        e("v_mul_u32_u24 v14, 0xa0, v4")
        e("v_lshl_add_u32 v15, v11, 3, v14")
        e(f"v_add_u32 v15, {HIMG+128}, v15")
        e("v_lshl_add_u32 v14, v5, 3, v14")
        e(f"v_add_u32 v14, {HIMG}, v14")
        for k in range(24, 40):
            e(f"v_and_b32 v{k}, s{sC0}, v{k}")
        for base in (24, 32):
            for k in range(4):
                e(f"v_max_f32 v{base+k}, 0, v{base+k}")
            for k in range(4):
                e(f"v_mul_f32 v{base+k}, v{base+k}, v{base+4+k}")
        e("v_cvt_pk_bf16_f32 v16, v24, v25")
        e("v_cvt_pk_bf16_f32 v17, v26, v27")
        e("v_cvt_pk_bf16_f32 v18, v32, v33")
        e("v_cvt_pk_bf16_f32 v19, v34, v35")
        e("ds_write_b64 v14, v[16:17]")
        e("ds_write_b64 v15, v[18:19]")
        e("s_branch L_x_b2")
        e("L_x_qonly:")
        self.poll_head("L_pq")
        e(f"buffer_load_dwordx4 v[20:23], v8, {srd(SWS)}, s{sA} offen{self.xf}")
        e("s_waitcnt vmcnt(0)")
        e(f"v_perm_b32 v12, v21, v20, s{sSelLo}")
        e(f"v_xor_b32 v12, v12, v{vTag}")
        self.poll_tail("L_pq", 12)
        e(f"v_perm_b32 v12, v21, v20, s{sSelHi}")
        e(f"v_perm_b32 v13, v23, v22, s{sSelHi}")
        e("ds_write_b64 v2, v[12:13]")
        e("L_x_b2:")
        if self.diag:
            e(f"s_mov_b32 s{sSTAMP+2*15}, s{sCNT}")
        e("s_waitcnt lgkmcnt(0)")
        self.stamp(4)
        e("s_barrier")
        e("v_lshrrev_b32 v8, 5, v0")
        e("v_lshlrev_b32 v8, 4, v8")
        e(f"v_add_u32 v8, {MAXT}, v8")
        e(f"v_add_u32 v2, {OPART}, v1")
        e("v_lshlrev_b32 v9, 12, v4")
        e("v_lshl_add_u32 v9, v5, 4, v9")
        e(f"s_lshl_b32 s{sA}, s{sH}, 14")
        e(f"s_and_b32 s{sB}, s{sJ}, 3")
        e(f"s_lshl_b32 s{sB}, s{sB}, 10")
        e(f"s_add_u32 s{sA}, s{sA}, s{sB}")
        e(f"s_lshr_b32 s{sB}, s{sJ}, 2")
        e(f"s_lshl_b32 s{sB}, s{sB}, 8")
        e(f"s_add_u32 s{sA}, s{sA}, s{sB}")
        e(f"s_add_u32 s{sA}, s{sA}, {OOFF}")
        e("s_barrier")
        e("ds_read_b128 v[12:15], v8")
        e("s_waitcnt lgkmcnt(0)")
        e("v_max3_f32 v10, v12, v13, v14")
        e("v_max_f32 v10, v10, v15")
        e(f"v_mul_f32 v10, {hex(f2u(CSCALE))}, v10")
        self.stamp(5)
        e("s_barrier")
        self.stamp(6)
        e(f"ds_read_b128 v[12:15], v8 offset:{LT-MAXT}")
        for w in range(4):
            e(f"ds_read_b128 {vr(20+4*w,4)}, v2 offset:{1024*w}")
        e("s_waitcnt lgkmcnt(4)")
        e("v_add_f32 v12, v12, v13")
        e("v_add_f32 v14, v14, v15")
        e("v_add_f32 v12, v12, v14")
        e("v_rcp_f32 v13, v12")
        e("v_log_f32 v12, v12")
        e("s_waitcnt lgkmcnt(2)")
        e("v_pk_add_f32 v[20:21], v[20:21], v[24:25]")
        e("v_pk_add_f32 v[22:23], v[22:23], v[26:27]")
        e("v_add_f32 v10, v10, v12")
        e("s_waitcnt lgkmcnt(0)")
        e("v_pk_add_f32 v[28:29], v[28:29], v[32:33]")
        e("v_pk_add_f32 v[30:31], v[30:31], v[34:35]")
        e("v_pk_add_f32 v[20:21], v[20:21], v[28:29]")
        e("v_pk_add_f32 v[22:23], v[22:23], v[30:31]")
        for k in range(4):
            e(f"v_mul_f32 v{20+k}, v13, v{20+k}")
        e("v_cvt_pk_bf16_f32 v20, v20, v21")
        e("v_cvt_pk_bf16_f32 v22, v22, v23")
        e(f"v_perm_b32 v12, v20, v{vTag}, s{sSelLo}")
        e(f"v_perm_b32 v13, v20, v{vTag}, s{sSelHi}")
        e(f"v_perm_b32 v14, v22, v10, s{sSelLo}")
        e(f"v_perm_b32 v15, v22, v10, s{sSelHi}")
        e(f"buffer_store_dwordx4 v[12:15], v9, {srd(SWS)}, s{sA} offen{self.xf}")
        self.stamp(7)
        self.end()

    def build(self):
        e = self.e
        self.header()
        self.prologue()
        q0 = list(self.q)
        e(f"s_cmp_ge_u32 s{sJ}, 13")
        e("s_cbranch_scc1 L_an")
        self.section_A(True)
        qa = list(self.q)
        e("L_b:")
        self.section_B()
        qb = list(self.q)
        e(f"s_cmp_lt_u32 s{sJ}, 4")
        e("s_cbranch_scc1 L_c2")
        e("s_cmp_eq_u32 s3, 3")
        e("s_cbranch_scc1 L_c2")
        self.section_C(True)
        self.section_D1()
        e("L_c2:")
        self.q = list(qb)
        self.section_C(False)
        e(f"s_cmp_lt_u32 s{sJ}, 4")
        e("s_cbranch_scc1 L_d3")
        self.section_D2()
        e("L_d3:")
        self.section_D3()
        e("L_an:")
        self.q = list(q0)
        self.section_A(False)
        assert len(self.q) <= len(qa) and qa[len(qa) - len(self.q):] == self.q, (qa, self.q)
        e("s_branch L_b")
        self.q = list(q0)
        self.xwave()
        e("L_exit:")
        e("s_endpgm")
        self.footer()
        return "\n".join(self.o) + "\n"


if __name__ == "__main__":
    import argparse
    ap = argparse.ArgumentParser()
    ap.add_argument("out")
    ap.add_argument("--W", type=int, default=8)
    ap.add_argument("--W3", type=int, default=8)
    ap.add_argument("--qpos", type=int, default=12)
    ap.add_argument("--no-nt", action="store_true")
    ap.add_argument("--no-pf", action="store_true")
    ap.add_argument("--diag", action="store_true")
    ap.add_argument("--xflags", default="sc1")
    a = ap.parse_args()
    g = Gen(W=a.W, qpos=a.qpos, nt=not a.no_nt, diag=a.diag, W3=a.W3, xflags=a.xflags, pf=not a.no_pf)
    text = g.build()
    open(a.out, "w").write(text)
    import hazard
    pr = hazard.check(text)
    for x in pr:
        print("HAZARD", x)
```

```python
import sys, json, math, struct

NAME = "gated_mix__sliding_block_cached__glu_gated_reglu__decode"
STAMP_OFF = 200 << 20

EOFF = 0
QOFF = 4096
GOFF = QOFF + 65536
OOFF = GOFF + 2 * 73728
POFF = OOFF + 16 * 16384
WS_USED = POFF + 9 * 65536

W1SZ = 18432
KOFF = 4 * W1SZ
SC = KOFF + 65536
P1PART = SC
OPART = SC + 4096
QIMG = SC + 8192
HIMG = SC + 8704
OIMG = SC + 9344
MAXT = SC + 9920
LT = SC + 9952
GT = SC + 9984
LDS_BYTES = SC + 10240

SK, SV, SW1, SX, SWO, SWD, SWS, SOUT, SGW = 8, 12, 16, 20, 24, 28, 32, 36, 40
sH, sJ, sI, sXCD, sT, sMAT, sSO, sM, sKV, sRS, sRG, sCG, sA, sB, sSTEP, sCNT = range(44, 60)
sPAIR = 60
sSelLo, sSelHi = 62, 63
sSTAMP = 64
sC0, sC1, sC2, sC3, sC4, sC5 = 96, 97, 98, 99, 100, 101

SPIN_MAX = 20000


def f2u(x):
    return struct.unpack("<I", struct.pack("<f", x))[0]


CSCALE = (128 ** -0.5) * math.log2(math.e)
LOG2E = math.log2(math.e)


def srd(r):
    return f"s[{r}:{r+3}]"


def vr(a, n):
    return f"v[{a}:{a+n-1}]" if n > 1 else f"v{a}"


class Gen:
    def __init__(self, W=8, qpos=12, nt=True, diag=False, W3=8, xflags="sc1", pf=True, spin=0, amp=0):
        self.o = []
        self.W, self.qpos, self.diag, self.W3 = W, qpos, diag, W3
        self.nt = " nt" if nt else ""
        self.xf = " " + xflags
        self.pf = pf
        self.spin = spin
        self.amp = amp
        self.q = []
        self.nst = 0

    def e(self, s):
        self.o.append(s)

    def c(self, s):
        self.o.append("; " + s)

    def issued(self, name):
        self.q.append(name)
        assert len(self.q) <= 62

    def wait_vm(self, name):
        if name in self.q:
            k = self.q.index(name)
            n = len(self.q) - 1 - k
            self.e(f"s_waitcnt vmcnt({n})")
            self.q = self.q[k + 1:]

    def nbig(self):
        return len([x for x in self.q if not x.startswith(("x", "pf"))])

    def throttle(self, W):
        big = [x for x in self.q if not x.startswith(("x", "pf"))]
        if len(big) > W - 1:
            self.wait_vm(big[len(big) - W])

    def landed(self, name):
        return name not in self.q

    def stamp(self, k):
        if self.diag:
            self.e(f"s_memrealtime s[{sSTAMP+2*k}:{sSTAMP+2*k+1}]")

    def dump_stamps(self):
        if not self.diag:
            return
        e = self.e
        e("s_waitcnt vmcnt(0) lgkmcnt(0)")
        e("s_mov_b64 exec, 1")
        e(f"s_mul_i32 s{sA}, s2, 5")
        e(f"s_add_u32 s{sA}, s{sA}, s3")
        e(f"s_lshl_b32 s{sA}, s{sA}, 6")
        e(f"s_add_u32 s{sA}, s{sA}, {STAMP_OFF}")
        e("v_mov_b32 v1, 0")
        for k in range(16):
            e(f"v_mov_b32 v{4+k}, s{sSTAMP+2*k}")
        for k in range(4):
            e(f"buffer_store_dwordx4 {vr(4+4*k,4)}, v1, {srd(SWS)}, s{sA} offen offset:{16*k}")

    def end(self):
        self.dump_stamps()
        self.e("s_endpgm")

    def header(self):
        e = self.e
        e(f"; @launch grid=(256,1,1) block=(320,1,1) lds={LDS_BYTES}")
        e('.amdgcn_target "amdgcn-amd-amdhsa--gfx950"')
        e(".text")
        e(f".globl {NAME}_kernel")
        e(".p2align 8")
        e(f".type {NAME}_kernel,@function")
        e(f"{NAME}_kernel:")

    def footer(self):
        e = self.e
        e("L_code_end:")
        e('.section .rodata,"a"')
        e(".p2align 6")
        e(f".amdhsa_kernel {NAME}_kernel")
        e("  .amdhsa_next_free_vgpr 248")
        e("  .amdhsa_next_free_sgpr 102")
        e("  .amdhsa_accum_offset 248")
        e("  .amdhsa_group_segment_fixed_size 0")
        e("  .amdhsa_kernarg_size 104")
        e("  .amdhsa_user_sgpr_count 2")
        e("  .amdhsa_user_sgpr_kernarg_segment_ptr 1")
        e("  .amdhsa_system_sgpr_workgroup_id_x 1")
        e("  .amdhsa_float_denorm_mode_32 3")
        e(".end_amdhsa_kernel")

    def prologue(self):
        e = self.e
        if self.diag:
            for k in range(1, 16):
                e(f"s_mov_b32 s{sSTAMP+2*k}, 0")
        self.stamp(0)
        if self.spin or self.amp:
            e("s_memrealtime s[6:7]")
        e("s_cmp_ge_u32 s2, 256")
        e("s_cbranch_scc1 L_exit")
        e(f"s_load_dwordx2 s[{SK}:{SK+1}], s[0:1], 8")
        e(f"s_load_dwordx2 s[{SX}:{SX+1}], s[0:1], 0")
        if self.pf:
            self.c("pull the rest of the code into this die's L2")
            e("s_getpc_b64 s[4:5]")
            e("L_pc:")
            e("v_lshlrev_b32 v1, 7, v0")
            e("v_min_u32 v1, L_code_end-L_pc-4, v1")
            e("global_load_dword v247, v1, s[4:5]")
            self.issued("pf")
        e(f"s_lshr_b32 s{sI}, s2, 3")
        e(f"s_and_b32 s{sJ}, s{sI}, 15")
        e(f"s_lshr_b32 s{sMAT}, s{sI}, 4")
        e(f"s_lshl_b32 s{sA}, s{sMAT}, 3")
        e(f"s_add_u32 s{sA}, s{sA}, 48")
        e(f"s_cmp_lt_u32 s{sJ}, 4")
        e(f"s_cselect_b32 s{sA}, 24, s{sA}")
        e(f"s_load_dwordx2 s[{SW1}:{SW1+1}], s[0:1], s{sA}")
        e(f"s_load_dwordx2 s[{SV}:{SV+1}], s[0:1], 16")
        e(f"s_load_dwordx2 s[{SWS}:{SWS+1}], s[0:1], 96")
        e(f"s_load_dwordx2 s[{SWO}:{SWO+1}], s[0:1], 32")
        e(f"s_load_dwordx2 s[{SWD}:{SWD+1}], s[0:1], 64")
        e(f"s_load_dwordx2 s[{SGW}:{SGW+1}], s[0:1], 72")
        e(f"s_load_dwordx2 s[{SOUT}:{SOUT+1}], s[0:1], 80")
        e(f"s_movk_i32 s{sRS}, 0x2400")
        e(f"s_cselect_b32 s{sRS}, 0x2000, s{sRS}")
        e(f"s_mov_b32 s{SW1+2}, 5308416")
        e(f"s_cselect_b32 s{SW1+2}, 4718592, s{SW1+2}")
        e("v_lshrrev_b32 v1, 6, v0")
        e("v_and_b32 v0, 63, v0")
        e("v_readfirstlane_b32 s3, v1")
        e(f"s_and_b32 s{sXCD}, s2, 7")
        e(f"s_lshl_b32 s{sH}, s{sXCD}, 1")
        e(f"s_add_u32 s{sH}, s{sH}, s{sMAT}")
        for r, sz in ((SK, 67108864), (SV, 67108864), (SX, 4608), (SWO, 4718592), (SWD, 5308416),
                      (SWS, 0x10000000 if self.diag else WS_USED), (SOUT, 4608), (SGW, 1152)):
            e(f"s_mov_b32 s{r+2}, {sz}")
        for r in (SK, SV, SW1, SX, SWO, SWD, SWS, SOUT, SGW):
            e(f"s_mov_b32 s{r+3}, 0x20000")
        e(f"s_sub_u32 s{sA}, s{sJ}, 4")
        e(f"s_lshr_b32 s{sCG}, s{sA}, 2")
        e(f"s_and_b32 s{sA}, s{sA}, 3")
        e(f"s_lshl_b32 s{sRG}, s{sH}, 2")
        e(f"s_add_u32 s{sRG}, s{sRG}, s{sA}")
        e(f"s_mov_b32 s{sSelLo}, 0x05040100")
        e(f"s_mov_b32 s{sSelHi}, 0x07060302")
        e("s_cmp_eq_u32 s3, 4")
        e("s_cbranch_scc1 L_x")

    def load_tag(self):
        self.e(f"s_load_dword s{sT}, s[{SWS}:{SWS+1}], {EOFF}")

    def make_tag(self):
        self.e(f"s_mul_i32 s{sT}, s{sT}, 1664525")
        self.e(f"s_add_u32 s{sT}, s{sT}, 1013904223")

    vWe, vWo = 10, 11
    vK = 12
    vV = 16
    vT = 17
    vTag = 21
    vXo = 24
    vAcc = 44
    vSt = 60
    vQ = 92
    vMask = 108
    vO = 112
    vVd = 116
    vP = 180

    def dma(self, srdr, vo, off=0, name=None):
        o = f" offset:{off}" if off else ""
        self.e(f"buffer_load_dwordx4 v{vo}, {srd(srdr)}, s{sSO} offen{o}{self.nt} lds")
        self.issued(name)

    def lane_w_pattern(self, rs_operand):
        e = self.e
        e("v_lshrrev_b32 v1, 3, v0")
        e("v_and_b32 v2, 2, v1")
        e("v_and_b32 v3, 7, v0")
        e("v_xor_b32 v2, v2, v3")
        e("v_lshlrev_b32 v2, 4, v2")
        e(f"v_mad_u32_u24 v{self.vWe}, v1, {rs_operand}, v2")
        e(f"v_xor_b32 v{self.vWo}, 64, v{self.vWe}")

    def main_setup_kv(self):
        e = self.e
        e(f"s_lshr_b32 s{sA}, s{sJ}, 2")
        e(f"s_lshl_b32 s{sKV}, s{sA}, 24")
        e(f"s_lshl_b32 s{sA}, s{sH}, 20")
        e(f"s_add_u32 s{sKV}, s{sKV}, s{sA}")
        e(f"s_and_b32 s{sA}, s{sJ}, 3")
        e(f"s_lshl_b32 s{sA}, s{sA}, 2")
        e(f"s_add_u32 s{sA}, s{sA}, s3")
        e(f"s_lshl_b32 s{sA}, s{sA}, 14")
        e(f"s_add_u32 s{sKV}, s{sKV}, s{sA}")
        e(f"s_add_u32 s{sKV}, s{sKV}, {3072*256}")
        e("v_lshrrev_b32 v4, 4, v0")
        e("v_and_b32 v5, 15, v0")
        e("v_xor_b32 v6, v4, v5")
        e("v_lshlrev_b32 v6, 4, v6")
        e(f"v_lshl_add_u32 v{self.vK}, v4, 8, v6")
        e(f"v_xor_b32 v{self.vK+1}, 64, v{self.vK}")
        e(f"v_xor_b32 v{self.vK+2}, 0x80, v{self.vK}")
        e(f"v_xor_b32 v{self.vK+3}, 0xc0, v{self.vK}")
        e("v_lshlrev_b32 v6, 4, v5")
        e(f"v_lshl_add_u32 v{self.vV}, v4, 10, v6")

    def tr_addr(self):
        e = self.e
        e("v_lshrrev_b32 v4, 4, v0")
        e("v_bfe_u32 v5, v0, 2, 2")
        e("v_and_b32 v6, 3, v0")
        e("v_lshl_add_u32 v7, v4, 3, v5")
        e("v_lshlrev_b32 v7, 7, v7")
        e("v_lshl_add_u32 v7, v6, 3, v7")
        e(f"s_mul_i32 s{sA}, s3, {W1SZ}")
        e(f"v_add_u32 v7, s{sA}, v7")
        e("v_and_b32 v8, 1, v4")
        e("v_lshrrev_b32 v9, 1, v5")
        e("v_lshl_add_u32 v8, v8, 1, v9")
        e(f"v_lshl_add_u32 v{self.vT}, v8, 5, v7")
        e(f"v_xor_b32 v{self.vT+1}, 32, v{self.vT}")
        e(f"v_xor_b32 v{self.vT+2}, 64, v{self.vT}")
        e(f"v_xor_b32 v{self.vT+3}, 0x60, v{self.vT}")

    def k_issue_ops(self):
        ops = []
        for u in range(16):
            def f(u=u):
                e = self.e
                if u == 0:
                    e(f"s_mov_b32 s{sSO}, s{sKV}")
                    e(f"s_lshl_b32 s{sM}, s3, 14")
                    e(f"s_add_u32 s{sM}, s{sM}, {KOFF}")
                    e(f"s_mov_b32 m0, s{sM}")
                    e("s_nop 0")
                elif u % 4 == 0:
                    e(f"s_add_u32 s{sM}, s{sM}, 4096")
                    e(f"s_mov_b32 m0, s{sM}")
                    e(f"s_add_u32 s{sSO}, s{sSO}, 4096")
                self.dma(SK, self.vK + (u & 3), (u & 3) * 1024, f"K{u}")
            ops.append(f)
        return ops

    def v_issue_ops(self):
        ops = []
        for u in range(16):
            def f(u=u):
                e = self.e
                a, r = u >> 2, u & 3
                if r == 0:
                    e(f"s_add_u32 s{sB}, s{sKV}, {a*4096}")
                o = f" offset:{r*256}" if r else ""
                e(f"buffer_load_dwordx4 {vr(self.vVd+4*u,4)}, v{self.vV}, {srd(SV)}, s{sB} offen{o}{self.nt}")
                self.issued(f"V{u}")
            ops.append(f)
        return ops

    def section_A(self, with_w1):
        e = self.e
        W = self.W
        if with_w1:
            self.lane_w_pattern(f"s{sRS}")
            e(f"s_lshl_b32 s{sA}, s{sH}, 2")
            e(f"s_add_u32 s{sA}, s{sA}, s{sJ}")
            e(f"s_mul_i32 s{sB}, s{sXCD}, 9")
            e(f"s_add_u32 s{sB}, s{sB}, s{sJ}")
            e(f"s_sub_u32 s{sB}, s{sB}, 4")
            e(f"s_cmp_lt_u32 s{sJ}, 4")
            e(f"s_cselect_b32 s{sA}, s{sA}, s{sB}")
            e(f"s_lshl_b32 s{sA}, s{sA}, 7")
            e(f"s_mul_i32 s{sB}, s3, 144")
            e(f"s_mul_i32 s{sB}, s{sB}, s{sRS}")
            e(f"s_add_u32 s{sSO}, s{sA}, s{sB}")
            e(f"s_lshl_b32 s{sSTEP}, s{sRS}, 3")
            e(f"s_mul_i32 s{sM}, s3, {W1SZ}")
            e(f"s_mov_b32 m0, s{sM}")
            e("s_waitcnt lgkmcnt(0)")
            self.stamp(1)
            ops = []
            for u in range(18):
                def f(u=u):
                    if u:
                        e(f"s_add_u32 s{sM}, s{sM}, 1024")
                        e(f"s_mov_b32 m0, s{sM}")
                        e(f"s_add_u32 s{sSO}, s{sSO}, s{sSTEP}")
                    self.dma(SW1, self.vWo if u & 1 else self.vWe, 0, f"W{u}")
                ops.append(f)
            first = min(W, 18)
            for f in ops[:4]:
                f()
            e("v_and_b32 v1, 3, v0")
            e("v_mul_u32_u24 v1, 0x480, v1")
            e("v_lshrrev_b32 v4, 4, v0")
            e("v_lshl_add_u32 v2, v4, 4, v1")
            e("v_and_b32 v5, 1, v4")
            e("v_lshlrev_b32 v5, 4, v5")
            e("v_lshrrev_b32 v6, 1, v4")
            e("v_lshl_add_u32 v5, v6, 3, v5")
            e("v_add_u32 v3, v1, v5")
            e(f"s_mul_i32 s{sA}, s3, 288")
            e("s_mov_b32 exec_lo, 0x000f000f")
            e("s_mov_b32 exec_hi, 0x000f000f")
            for t in range(4):
                o = f" offset:{64*t}" if t else ""
                e(f"buffer_load_dwordx4 {vr(self.vXo+4*t,4)}, v2, {srd(SX)}, s{sA} offen{o}")
                self.issued(f"x{t}")
            e(f"buffer_load_dwordx2 {vr(self.vXo+16,2)}, v3, {srd(SX)}, s{sA} offen offset:256")
            self.issued("x4")
            e("s_mov_b64 exec, -1")
            for f in ops[4:first]:
                f()
            ops = ops[first:]
            self.load_tag()
            self.main_setup_kv()
            self.tr_addr()
            ops += self.k_issue_ops() + self.v_issue_ops()[:self.qpos]
            done_steps = 0
            waited_tag = False

            def p1_step(t):
                nonlocal waited_tag
                if not waited_tag:
                    e("s_waitcnt lgkmcnt(0)")
                    self.make_tag()
                    waited_tag = True
                self.wait_vm("x4")
                st = self.vSt + 16 * (t & 1)
                if t < 4:
                    for ct in range(4):
                        for z in range(2):
                            e(f"ds_read_b64_tr_b16 {vr(st+4*ct+2*z,2)}, v{self.vT+ct} offset:{(32*t+4*z)*128}")
                    for ct in range(4):
                        e(f"s_waitcnt lgkmcnt({6-2*ct})")
                        cin = vr(self.vAcc + 4 * ct, 4) if t else "0"
                        e(f"v_mfma_f32_16x16x32_bf16 {vr(self.vAcc+4*ct,4)}, {vr(st+4*ct,4)}, {vr(self.vXo+4*t,4)}, {cin}")
                else:
                    e("v_lshrrev_b32 v4, 4, v0")
                    e("v_and_b32 v5, 1, v4")
                    e("v_lshrrev_b32 v6, 1, v4")
                    e("v_sub_u32 v5, v5, v4")
                    e("v_lshlrev_b32 v5, 10, v5")
                    e("v_lshl_add_u32 v5, v6, 9, v5")
                    for ct in range(4):
                        e(f"v_add_u32 v{1+ct}, v5, v{self.vT+ct}")
                    for ct in range(4):
                        e(f"ds_read_b64_tr_b16 {vr(st+2*ct,2)}, v{1+ct} offset:{128*128}")
                    for ct in range(4):
                        e(f"s_waitcnt lgkmcnt({3-ct})")
                        e(f"v_mfma_f32_16x16x16_bf16 {vr(self.vAcc+4*ct,4)}, {vr(st+2*ct,2)}, {vr(self.vXo+16,2)}, {vr(self.vAcc+4*ct,4)}")
                    e("v_and_b32 v1, 3, v0")
                    e("v_lshlrev_b32 v1, 8, v1")
                    e("v_lshrrev_b32 v4, 4, v0")
                    e("v_lshl_add_u32 v1, v4, 4, v1")
                    e(f"s_lshl_b32 s{sA}, s3, 10")
                    e(f"s_add_u32 s{sA}, s{sA}, {P1PART}")
                    e(f"v_add_u32 v1, s{sA}, v1")
                    e("s_mov_b32 exec_lo, 0x000f000f")
                    e("s_mov_b32 exec_hi, 0x000f000f")
                    for ct in range(4):
                        e(f"ds_write_b128 v1, {vr(self.vAcc+4*ct,4)} offset:{64*ct}")
                    e("s_mov_b64 exec, -1")
                    e("s_waitcnt lgkmcnt(0)")
                    self.stamp(2)
                    e("s_barrier")

            def step_ready(t):
                last = 4 * t + 3 if t < 4 else 17
                return f"W{last}" in issued_names and self.landed(f"W{last}")

            issued_names = set(f"W{u}" for u in range(first))
            nW = first
            for f in ops:
                self.throttle(W)
                f()
                if nW < 18:
                    issued_names.add(f"W{nW}")
                    nW += 1
                while done_steps < 5 and step_ready(done_steps):
                    p1_step(done_steps)
                    done_steps += 1
            while done_steps < 5:
                last = 4 * done_steps + 3 if done_steps < 4 else 17
                self.wait_vm(f"W{last}")
                p1_step(done_steps)
                done_steps += 1
        else:
            self.main_setup_kv()
            e("s_waitcnt lgkmcnt(0)")
            self.stamp(1)
            ops = self.k_issue_ops() + self.v_issue_ops()[:self.qpos]
            for n, f in enumerate(ops):
                self.throttle(W)
                f()
                if n == min(W, 16) - 1:
                    self.load_tag()
                    self.tr_addr()
            e("s_waitcnt lgkmcnt(0)")
            self.make_tag()
        self.wait_vm("K15")
        assert self.q == [f"V{u}" for u in range(self.qpos)][len(range(self.qpos)) - len(self.q):], self.q

    def section_B(self):
        e = self.e
        vK, vS, vQ, vMask = self.vK, self.vAcc, self.vQ, self.vMask
        vops = self.v_issue_ops()[self.qpos:]
        e("v_and_b32 v5, 15, v0")
        e("v_lshrrev_b32 v4, 4, v0")
        e("v_xor_b32 v6, v4, v5")
        e("v_lshlrev_b32 v6, 4, v6")
        e("v_lshl_add_u32 v6, v5, 8, v6")
        e(f"s_lshl_b32 s{sA}, s3, 14")
        e(f"s_add_u32 s{sA}, s{sA}, {KOFF}")
        e(f"v_add_u32 v{vK}, s{sA}, v6")
        e(f"v_xor_b32 v{vK+1}, 64, v{vK}")
        e(f"v_xor_b32 v{vK+2}, 0x80, v{vK}")
        e(f"v_xor_b32 v{vK+3}, 0xc0, v{vK}")
        e("v_lshrrev_b32 v7, 3, v5")
        e("v_lshlrev_b32 v8, 8, v7")
        e("v_lshl_add_u32 v8, v4, 4, v8")
        e(f"v_add_u32 v8, {QIMG}, v8")
        e("v_lshlrev_b32 v9, 4, v7")
        e(f"v_add_u32 v9, {MAXT}, v9")
        e(f"s_lshl_b32 s{sA}, s3, 2")
        e(f"v_add_u32 v7, s{sA}, v9")
        e("v_and_b32 v1, 1, v0")
        e("v_lshlrev_b32 v1, 4, v1")
        e("v_mov_b32 v2, 0xffff")
        e("v_lshlrev_b32 v1, v1, v2")
        e("v_bfe_u32 v2, v0, 1, 2")
        for qd in range(4):
            e(f"v_cmp_eq_u32 vcc, {qd}, v2")
            e("s_nop 1")
            e(f"v_cndmask_b32 v{vMask+qd}, 0, v1, vcc")
        def kread(a):
            for t in range(4):
                e(f"ds_read_b128 {vr(self.vSt+16*(a&1)+4*t,4)}, v{vK+t} offset:{a*4096}")
        kread(0)
        kread(1)
        self.stamp(3)
        e("s_barrier")
        self.stamp(4)
        for t in range(4):
            e(f"ds_read_b128 {vr(vQ+4*t,4)}, v8 offset:{64*t}")
        e("s_waitcnt lgkmcnt(0)")
        def qk(a):
            for t in range(4):
                cin = vr(vS + 4 * a, 4) if t else "0"
                e(f"v_mfma_f32_16x16x32_bf16 {vr(vS+4*a,4)}, {vr(self.vSt+16*(a&1)+4*t,4)}, {vr(vQ+4*t,4)}, {cin}")
        qk(0)
        kread(2)
        qk(1)
        kread(3)
        n_early = (len(vops) + 1) // 2
        for f in vops[:n_early]:
            f()
        e("s_waitcnt lgkmcnt(4)")
        qk(2)
        e("s_waitcnt lgkmcnt(0)")
        qk(3)
        e(f"v_max3_f32 v1, v{vS}, v{vS+1}, v{vS+2}")
        e(f"v_max3_f32 v1, v1, v{vS+3}, v{vS+4}")
        e(f"v_max3_f32 v1, v1, v{vS+5}, v{vS+6}")
        e(f"v_max_f32 v1, v1, v{vS+7}")
        e(f"v_max3_f32 v2, v{vS+8}, v{vS+9}, v{vS+10}")
        e(f"v_max_f32 v2, v2, v{vS+11}")
        e("s_nop 2")
        e(f"v_max3_f32 v1, v1, v{vS+12}, v{vS+13}")
        e(f"v_max3_f32 v2, v2, v{vS+14}, v{vS+15}")
        e("v_max_f32 v1, v1, v2")
        e("v_mov_b32 v2, v1")
        e("s_nop 1")
        e("v_permlane32_swap_b32 v1, v2")
        e("v_max_f32 v1, v1, v2")
        e("v_mov_b32 v2, v1")
        e("s_nop 1")
        e("v_permlane16_swap_b32 v1, v2")
        e("v_max_f32 v1, v1, v2")
        e("s_mov_b64 exec, 0x101")
        e("ds_write_b32 v7, v1")
        e("s_mov_b64 exec, -1")
        e("s_waitcnt lgkmcnt(0)")
        e("s_barrier")
        e(f"ds_read_b128 v[2:5], v9")
        for f in vops[n_early:]:
            f()
        e(f"s_mov_b32 s{sA}, {hex(f2u(CSCALE))}")
        e("s_waitcnt lgkmcnt(0)")
        e("v_max3_f32 v1, v2, v3, v4")
        e("v_max_f32 v1, v1, v5")
        e(f"v_mul_f32 v1, s{sA}, v1")
        for k in range(16):
            e(f"v_fma_f32 v{vS+k}, v{vS+k}, s{sA}, -v1")
        for k in range(16):
            e(f"v_exp_f32 v{vS+k}, v{vS+k}")
        for k in range(16):
            e(f"v_cvt_pk_bf16_f32 v2, v{vS+k}, v{vS+k}")
            for qd in range(4):
                e(f"v_and_b32 v{self.vP+4*k+qd}, v2, v{vMask+qd}")
        e(f"v_add_f32 v1, v{vS}, v{vS+1}")
        e(f"v_add_f32 v2, v{vS+2}, v{vS+3}")
        for k in range(4, 16, 2):
            e(f"v_add_f32 v1, v1, v{vS+k}")
            e(f"v_add_f32 v2, v2, v{vS+k+1}")
        e("v_add_f32 v1, v1, v2")
        e("v_mov_b32 v2, v1")
        e("s_nop 1")
        e("v_permlane32_swap_b32 v1, v2")
        e("v_add_f32 v1, v1, v2")
        e("v_mov_b32 v2, v1")
        e("s_nop 1")
        e("v_permlane16_swap_b32 v1, v2")
        e("v_add_f32 v1, v1, v2")
        e("s_mov_b64 exec, 0x101")
        e(f"ds_write_b32 v7, v1 offset:{LT-MAXT}")
        e("s_mov_b64 exec, -1")
        e("v_lshrrev_b32 v4, 4, v0")
        e("v_and_b32 v5, 15, v0")
        e("v_lshrrev_b32 v6, 1, v4")
        e("v_and_b32 v4, 1, v4")
        e("v_lshlrev_b32 v6, 9, v6")
        e("v_lshl_add_u32 v6, v5, 5, v6")
        e("v_lshl_add_u32 v6, v4, 4, v6")
        e(f"s_lshl_b32 s{sA}, s3, 10")
        e(f"s_add_u32 s{sA}, s{sA}, {OPART}")
        e(f"v_add_u32 v9, s{sA}, v6")
        self.stamp(5)

    def p3_issue_ops(self):
        e = self.e
        ops = []
        order = [("d", u) for u in range(9)] + [("o", u) for u in range(8)]
        for kind, u in order:
            def f(kind=kind, u=u):
                if u == 0:
                    rows = 72 if kind == "d" else 64
                    e(f"s_mul_i32 s{sSO}, s{sRG}, {rows*1152}")
                    e(f"s_add_u32 s{sSO}, s{sSO}, s{sSTEP}")
                    e(f"s_mul_i32 s{sM}, s3, {W1SZ}")
                    if kind == "d":
                        e(f"s_add_u32 s{sM}, s{sM}, 8192")
                    e(f"s_mov_b32 m0, s{sM}")
                    e("s_nop 0")
                else:
                    e(f"s_add_u32 s{sM}, s{sM}, 1024")
                    e(f"s_mov_b32 m0, s{sM}")
                    e(f"s_add_u32 s{sSO}, s{sSO}, {8*1152}")
                self.dma(SWD if kind == "d" else SWO, self.vWo if u & 1 else self.vWe, 0, f"{kind}{u}")
            ops.append(f)
        return ops

    def section_C(self, with_p3):
        e = self.e
        ops = []
        if with_p3:
            e(f"s_movk_i32 s{sA}, 0x480")
            self.lane_w_pattern(f"s{sA}")
            e(f"s_mul_i32 s{sSTEP}, s{sCG}, 3")
            e(f"s_add_u32 s{sSTEP}, s{sSTEP}, s3")
            e(f"s_lshl_b32 s{sSTEP}, s{sSTEP}, 7")
            ops = self.p3_issue_ops()
        for u in range(16):
            while ops and self.nbig() < self.W3:
                ops.pop(0)()
            self.wait_vm(f"V{u}")
            cin = vr(self.vO, 4) if u else "0"
            e(f"v_mfma_f32_16x16x32_bf16 {vr(self.vO,4)}, {vr(self.vP+4*u,4)}, {vr(self.vVd+4*u,4)}, {cin}")
        self.stamp(6)
        e("s_nop 7")
        e(f"ds_write_b128 v9, {vr(self.vO,4)}")
        e("s_waitcnt lgkmcnt(0)")
        e("s_barrier")
        for f in ops:
            self.throttle(self.W3)
            f()

    def section_D1(self):
        e = self.e
        vT, acc = self.vT, self.vAcc
        e("v_and_b32 v1, 3, v0")
        e("v_lshrrev_b32 v4, 4, v0")
        e("v_mul_u32_u24 v2, 0xa0, v1")
        e("v_lshl_add_u32 v3, v4, 4, v2")
        e(f"v_add_u32 v3, {HIMG}, v3")
        e("v_lshrrev_b32 v6, 1, v4")
        e("v_and_b32 v5, 1, v4")
        e("v_sub_u32 v7, 1, v5")
        e("v_mul_u32_u24 v7, v7, v6")
        e("v_lshlrev_b32 v7, 3, v7")
        e("v_lshl_add_u32 v7, v5, 4, v7")
        e("v_add_u32 v7, v7, v2")
        e(f"v_add_u32 v7, {HIMG+128}, v7")
        e("v_lshlrev_b32 v8, 2, v1")
        e(f"v_add_u32 v8, {GT}, v8")
        e(f"ds_read_b128 {vr(self.vQ,4)}, v3")
        e(f"ds_read_b128 {vr(self.vQ+4,4)}, v3 offset:64")
        e(f"ds_read_b64 {vr(self.vQ+8,2)}, v7")
        e(f"ds_read_b32 v{self.vQ+10}, v8 offset:16")
        e("v_mul_u32_u24 v2, 0x90, v1")
        e("v_lshl_add_u32 v9, v4, 4, v2")
        e(f"v_add_u32 v9, {OIMG}, v9")
        e("v_lshlrev_b32 v5, 10, v4")
        e("v_lshlrev_b32 v6, 9, v6")
        e("v_sub_u32 v5, v6, v5")
        for ct in range(4):
            e(f"v_add_u32 v{self.vK+ct}, v5, v{vT+ct}")
        e(f"v_mov_b32 v{self.vTag}, s{sT}")
        e("v_lshlrev_b32 v8, 4, v0")
        e(f"s_lshl_b32 s{sB}, s{sSTEP}, 9")
        e(f"s_lshl_b32 s{sA}, s{sRG}, 10")
        e(f"s_add_u32 s{sB}, s{sB}, s{sA}")
        e(f"s_add_u32 s{sB}, s{sB}, {POFF}")
        for r in range(4):
            e(f"s_mov_b32 s{sC0+r}, {hex(0x07060500+r)}")
        D = self.vVd
        for t in range(2):
            self.wait_vm(f"d{4*t+3}")
            for ct in range(4):
                for z in range(2):
                    e(f"ds_read_b64_tr_b16 {vr(D+16*t+4*ct+2*z,2)}, v{vT+ct} offset:{(64+32*t+4*z)*128}")
            for ct in range(4):
                e(f"s_waitcnt lgkmcnt({6-2*ct})")
                cin = vr(acc + 4 * ct, 4) if t else "0"
                e(f"v_mfma_f32_16x16x32_bf16 {vr(acc+4*ct,4)}, {vr(D+16*t+4*ct,4)}, {vr(self.vQ+4*t,4)}, {cin}")
        self.wait_vm("d8")
        for ct in range(4):
            e(f"ds_read_b64_tr_b16 {vr(D+32+2*ct,2)}, v{self.vK+ct} offset:{128*128}")
        for ct in range(4):
            e(f"s_waitcnt lgkmcnt({3-ct})")
            e(f"v_mfma_f32_16x16x16_bf16 {vr(acc+4*ct,4)}, {vr(D+32+2*ct,2)}, {vr(self.vQ+8,2)}, {vr(acc+4*ct,4)}")
        self.stamp(7)
        P = self.vP
        self.wait_vm("o3")
        for ct in range(4):
            for z in range(2):
                e(f"ds_read_b64_tr_b16 {vr(P+4*ct+2*z,2)}, v{vT+ct} offset:{(4*z)*128}")
        for k in range(16):
            e(f"v_mul_f32 v{acc+k}, v{self.vQ+10}, v{acc+k}")
        self.wait_vm("o7")
        for ct in range(4):
            for z in range(2):
                e(f"ds_read_b64_tr_b16 {vr(P+16+4*ct+2*z,2)}, v{vT+ct} offset:{(32+4*z)*128}")
        self.stamp(8)
        e("s_barrier")
        self.stamp(9)
        e(f"ds_read_b128 {vr(self.vQ,4)}, v9")
        e(f"ds_read_b128 {vr(self.vQ+4,4)}, v9 offset:64")
        for t in range(2):
            e(f"s_waitcnt lgkmcnt({1-t})")
            for ct in range(4):
                e(f"v_mfma_f32_16x16x32_bf16 {vr(acc+4*ct,4)}, {vr(P+16*t+4*ct,4)}, {vr(self.vQ+4*t,4)}, {vr(acc+4*ct,4)}")
        e("s_nop 5")
        for ct in range(1, 4):
            for r in range(4):
                e(f"v_mov_b32_dpp v{acc+r}, v{acc+4*ct+r} quad_perm:[0,1,2,3] row_mask:0xf bank_mask:{hex(1<<ct)}")
        for r in range(4):
            e(f"v_perm_b32 v{4+r}, v{acc+r}, v{self.vTag}, s{sC0+r}")
        e(f"buffer_store_dwordx4 v[4:7], v8, {srd(SWS)}, s{sB} offen{self.xf}")
        self.stamp(10)
        self.end()

    def amp_spin(self, tag, K):
        e = self.e
        e("s_memrealtime s[4:5]")
        e("s_waitcnt lgkmcnt(0)")
        e("s_sub_u32 s4, s4, s6")
        e(f"s_mul_i32 s4, s4, {K}")
        e("s_add_u32 s6, s6, s4")
        e(f"s_mov_b32 s{sCNT}, 0")
        e(f"L_spin{tag}:")
        e("s_memrealtime s[4:5]")
        e(f"s_add_u32 s{sCNT}, s{sCNT}, 1")
        e("s_waitcnt lgkmcnt(0)")
        e(f"s_cmp_gt_u32 s{sCNT}, 100000")
        e(f"s_cbranch_scc1 L_spin{tag}_out")
        e("s_sub_u32 s4, s4, s6")
        e("s_cmp_lt_i32 s4, 0")
        e(f"s_cbranch_scc1 L_spin{tag}")
        e(f"L_spin{tag}_out:")

    def poll_head(self, lab):
        self.e(f"s_mov_b32 s{sCNT}, 0")
        self.e(f"{lab}:")

    def poll_tail(self, lab, vbad):
        e = self.e
        e(f"v_cmp_ne_u32 vcc, 0, v{vbad}")
        e(f"s_add_u32 s{sCNT}, s{sCNT}, 1")
        e(f"s_cmp_gt_u32 s{sCNT}, {SPIN_MAX}")
        e(f"s_cbranch_scc1 {lab}_out")
        e(f"s_cbranch_vccnz {lab}")
        e(f"{lab}_out:")

    def section_D2(self):
        e = self.e
        e("v_lshlrev_b32 v1, 4, v0")
        e(f"s_lshl_b32 s{sB}, s{sRG}, 12")
        e(f"s_add_u32 s{sB}, s{sB}, {OOFF}")
        e("v_lshrrev_b32 v4, 4, v0")
        e("v_and_b32 v5, 15, v0")
        e("v_mul_u32_u24 v2, 0x90, v4")
        e("v_lshl_add_u32 v2, v5, 3, v2")
        e(f"v_add_u32 v2, {OIMG}, v2")
        e("v_lshlrev_b32 v3, 2, v4")
        e(f"v_add_u32 v3, {GT}, v3")
        e("ds_read_b32 v3, v3")
        e(f"v_mov_b32 v{self.vTag}, s{sT}")
        e(f"s_mov_b32 s{sC0}, 0xffff0000")
        D = self.vVd
        self.poll_head("L_po")
        for s in range(4):
            o = f" offset:{1024*s}" if s else ""
            e(f"buffer_load_dwordx4 {vr(D+4*s,4)}, v1, {srd(SWS)}, s{sB} offen{o}{self.xf}")
        for s in range(4):
            e(f"s_waitcnt vmcnt({3-s})")
            e(f"v_perm_b32 v{4+s}, v{D+4*s+1}, v{D+4*s}, s{sSelLo}")
            e(f"v_xor_b32 v{4+s}, v{4+s}, v{self.vTag}")
            e(f"v_perm_b32 v{24+s}, v{D+4*s+3}, v{D+4*s+2}, s{sSelLo}")
        e("v_or3_b32 v4, v4, v5, v6")
        e("v_or_b32 v4, v4, v7")
        self.poll_tail("L_po", 4)
        self.stamp(8)
        e("v_max3_f32 v4, v24, v25, v26")
        e("v_max_f32 v4, v4, v27")
        for s in range(4):
            e(f"v_sub_f32 v{24+s}, v{24+s}, v4")
        for s in range(4):
            e(f"v_exp_f32 v{24+s}, v{24+s}")
        for k in range(4):
            e(f"v_and_b32 v{D+k}, s{sC0}, v{D+k}")
        e("v_add_f32 v4, v24, v25")
        e("v_add_f32 v5, v26, v27")
        e("v_add_f32 v4, v4, v5")
        e("v_rcp_f32 v4, v4")
        for k in range(4, 16):
            e(f"v_and_b32 v{D+k}, s{sC0}, v{D+k}")
        for k in range(4):
            e(f"v_mul_f32 v{28+k}, v24, v{D+k}")
        for s in range(1, 4):
            for k in range(4):
                e(f"v_fmac_f32 v{28+k}, v{24+s}, v{D+4*s+k}")
        e("s_waitcnt lgkmcnt(0)")
        e("v_mul_f32 v4, v4, v3")
        for k in range(4):
            e(f"v_mul_f32 v{28+k}, v4, v{28+k}")
        e("v_cvt_pk_bf16_f32 v6, v28, v29")
        e("v_cvt_pk_bf16_f32 v7, v30, v31")
        e("ds_write_b64 v2, v[6:7]")
        e("s_waitcnt lgkmcnt(0)")
        self.stamp(9)
        e("s_barrier")
        self.end()

    def section_D3(self):
        e = self.e
        e(f"s_lshl_b32 s{sA}, s3, 2")
        e(f"s_add_u32 s{sA}, s{sA}, s{sJ}")
        e(f"s_cmp_gt_u32 s{sA}, 8")
        e("s_cbranch_scc1 L_fin")
        e(f"s_mul_i32 s{sB}, s{sH}, 9")
        e(f"s_add_u32 s{sA}, s{sA}, s{sB}")
        e(f"s_lshr_b32 s{sCG}, s{sA}, 4")
        e(f"s_and_b32 s{sRG}, s{sA}, 15")
        e(f"s_lshl_b32 s{sB}, s{sCG}, 16")
        e(f"s_lshl_b32 s{sSO}, s{sRG}, 6")
        e(f"s_add_u32 s{sB}, s{sB}, s{sSO}")
        e(f"s_add_u32 s{sB}, s{sB}, {POFF}")
        for u in range(1, 4):
            e(f"s_add_u32 s{sC0+u}, s{sB}, {16384*u}")
        e(f"s_mov_b32 s{sC0}, s{sB}")
        e("v_lshrrev_b32 v1, 2, v0")
        e("v_and_b32 v2, 3, v0")
        e("v_lshlrev_b32 v1, 10, v1")
        e("v_lshl_add_u32 v1, v2, 4, v1")
        e("v_mul_u32_u24 v2, 0x480, v2")
        e(f"s_and_b32 s{sSO}, s{sRG}, 3")
        e(f"s_lshl_b32 s{sSO}, s{sSO}, 5")
        e(f"s_lshr_b32 s{sM}, s{sRG}, 2")
        e(f"s_lshl_b32 s{sM}, s{sM}, 3")
        e(f"s_add_u32 s{sSO}, s{sSO}, s{sM}")
        e(f"s_lshl_b32 s{sM}, s{sCG}, 7")
        e(f"s_add_u32 s{sSO}, s{sSO}, s{sM}")
        e(f"v_mov_b32 v{self.vTag}, s{sT}")
        e(f"s_mov_b32 s{sC4}, 0x0c0c0400")
        e(f"s_mov_b32 s{sC5}, 0x04000c0c")
        e(f"s_mov_b32 s{sM}, 0xffffff00")
        D = self.vVd
        self.poll_head("L_pr")
        for u in range(4):
            e(f"buffer_load_dwordx4 {vr(D+4*u,4)}, v1, {srd(SWS)}, s{sC0+u} offen{self.xf}")
        for u in range(4):
            e(f"s_waitcnt vmcnt({3-u})")
            e(f"v_perm_b32 v{4+u}, v{D+4*u+1}, v{D+4*u}, s{sC4}")
            e(f"v_perm_b32 v8, v{D+4*u+3}, v{D+4*u+2}, s{sC5}")
            e(f"v_or_b32 v{4+u}, v{4+u}, v8")
            e(f"v_xor_b32 v{4+u}, v{4+u}, v{self.vTag}")
        e("v_or3_b32 v4, v4, v5, v6")
        e("v_or_b32 v4, v4, v7")
        self.poll_tail("L_pr", 4)
        self.stamp(8)
        for k in range(16):
            e(f"v_and_b32 v{D+k}, s{sM}, v{D+k}")
        for k in range(4):
            e(f"v_add_f32 v{D+k}, v{D+k}, v{D+4+k}")
            e(f"v_add_f32 v{D+8+k}, v{D+8+k}, v{D+12+k}")
        for k in range(4):
            e(f"v_add_f32 v{D+k}, v{D+k}, v{D+8+k}")
        for rot in (4, 8):
            for k in range(4):
                e(f"v_add_f32_dpp v{D+k}, v{D+k}, v{D+k} row_ror:{rot} row_mask:0xf bank_mask:0xf")
        for sw in ("16", "32"):
            for k in range(4):
                e(f"v_mov_b32 v{D+4+k}, v{D+k}")
            for k in range(4):
                e(f"v_permlane{sw}_swap_b32 v{D+k}, v{D+4+k}")
            for k in range(4):
                e(f"v_add_f32 v{D+k}, v{D+k}, v{D+4+k}")
        e(f"v_cvt_pk_bf16_f32 v4, v{D}, v{D+1}")
        e(f"v_cvt_pk_bf16_f32 v5, v{D+2}, v{D+3}")
        e("s_mov_b64 exec, 15")
        e(f"buffer_store_dwordx2 v[4:5], v2, {srd(SOUT)}, s{sSO} offen")
        if self.amp:
            self.amp_spin("a", self.amp)
        e(f"s_cmp_lg_u32 s{sA}, 0")
        e("s_cbranch_scc1 L_fin")
        self.c("the hand-off tag of this launch becomes the seed of the next one")
        e("s_mov_b64 exec, 1")
        e("v_mov_b32 v1, 0")
        e(f"buffer_store_dword v{self.vTag}, v1, {srd(SWS)}, 0 offen offset:{EOFF}")
        e("L_fin:")
        self.stamp(9)
        self.end()

    def xwave(self):
        e = self.e
        vTag = 3
        e("L_x:")
        e("s_setprio 2")
        e("v_lshrrev_b32 v4, 4, v0")
        e("v_and_b32 v5, 15, v0")
        e("v_lshlrev_b32 v6, 3, v5")
        e("v_mul_u32_u24 v7, 0x480, v4")
        e("v_add_u32 v7, v7, v6")
        e("s_waitcnt lgkmcnt(0)")
        self.stamp(1)
        self.load_tag()
        e(f"s_mov_b32 s{sC0}, 0xffff0000")
        e(f"s_cmp_lt_u32 s{sJ}, 4")
        e("s_cbranch_scc1 L_x_nog")
        for u in range(9):
            o = f" offset:{128*u}" if u else ""
            e(f"buffer_load_dwordx2 {vr(20+2*u,2)}, v7, {srd(SX)}, 0 offen{o}")
            e(f"buffer_load_dwordx2 {vr(40+2*u,2)}, v6, {srd(SGW)}, 0 offen{o}")
        e("v_mov_b32 v8, 0")
        e("v_mov_b32 v9, 0")
        e("v_mul_u32_u24 v10, 0xa0, v4")
        e("v_and_b32 v11, 1, v5")
        e("v_lshl_add_u32 v11, v11, 3, v10")
        e(f"v_add_u32 v11, {HIMG+144}, v11")
        e("ds_write_b64 v11, v[8:9]")
        for k in range(18):
            if k % 2 == 0:
                e(f"s_waitcnt vmcnt({16-k})")
            e(f"v_lshlrev_b32 v12, 16, v{20+k}")
            e(f"v_and_b32 v13, s{sC0}, v{20+k}")
            e(f"v_lshlrev_b32 v14, 16, v{40+k}")
            e(f"v_and_b32 v15, s{sC0}, v{40+k}")
            e("v_pk_mul_f32 v[12:13], v[12:13], v[14:15]")
            e("v_cvt_pk_bf16_f32 v13, v12, v13")
            e("v_lshlrev_b32 v12, 16, v13")
            e(f"v_and_b32 v13, s{sC0}, v13")
            e("v_pk_add_f32 v[8:9], v[8:9], v[12:13]")
        e("v_add_f32 v8, v8, v9")
        for rot in (8, 4, 2, 1):
            e("s_nop 1")
            e(f"v_add_f32_dpp v8, v8, v8 row_ror:{rot} row_mask:0xf bank_mask:0xf")
        e("v_cvt_pk_bf16_f32 v8, v8, v8")
        e(f"v_and_b32 v8, s{sC0}, v8")
        e(f"v_mul_f32 v8, {hex(f2u(-LOG2E))}, v8")
        e("v_exp_f32 v8, v8")
        e("s_nop 0")
        e("v_add_f32 v8, 1.0, v8")
        e("v_rcp_f32 v8, v8")
        e("s_nop 0")
        e("v_cvt_pk_bf16_f32 v8, v8, v8")
        e(f"v_and_b32 v8, s{sC0}, v8")
        e("v_sub_f32 v9, 1.0, v8")
        e("v_cvt_pk_bf16_f32 v9, v9, v9")
        e(f"v_and_b32 v9, s{sC0}, v9")
        e("v_lshlrev_b32 v11, 2, v4")
        e(f"v_add_u32 v11, {GT}, v11")
        e("ds_write2_b32 v11, v8, v9 offset0:0 offset1:4")
        e("L_x_nog:")
        e("s_waitcnt lgkmcnt(0)")
        self.make_tag()
        e(f"v_mov_b32 v{vTag}, s{sT}")
        e("v_lshlrev_b32 v1, 4, v0")
        e(f"s_cmp_ge_u32 s{sJ}, 13")
        e("s_cbranch_scc1 L_x_nop1")
        e(f"v_add_u32 v2, {P1PART}, v1")
        e(f"s_lshl_b32 s{sA}, s{sH}, 2")
        e(f"s_add_u32 s{sA}, s{sA}, s{sJ}")
        e(f"s_lshl_b32 s{sA}, s{sA}, 10")
        e(f"s_add_u32 s{sA}, s{sA}, {QOFF}")
        e(f"s_mul_i32 s{sB}, s{sXCD}, 9")
        e(f"s_add_u32 s{sB}, s{sB}, s{sJ}")
        e(f"s_lshl_b32 s{sB}, s{sB}, 8")
        e(f"s_mul_i32 s{sSO}, s{sMAT}, 73728")
        e(f"s_add_u32 s{sB}, s{sB}, s{sSO}")
        e(f"s_add_u32 s{sB}, s{sB}, {GOFF-4*256}")
        e(f"s_movk_i32 s{sM}, 0x4800")
        e(f"s_cmp_lt_u32 s{sJ}, 4")
        e(f"s_cselect_b32 s{sSO}, s{sA}, s{sB}")
        e(f"s_cselect_b32 s{sM}, 0x100, s{sM}")
        e("v_lshlrev_b32 v8, 4, v5")
        e(f"v_mad_u32_u24 v8, v4, s{sM}, v8")
        self.stamp(2)
        e("s_barrier")
        for w in range(4):
            e(f"ds_read_b128 {vr(20+4*w,4)}, v2 offset:{1024*w}")
        e("s_waitcnt lgkmcnt(2)")
        e("v_pk_add_f32 v[20:21], v[20:21], v[24:25]")
        e("v_pk_add_f32 v[22:23], v[22:23], v[26:27]")
        e("s_waitcnt lgkmcnt(0)")
        e("v_pk_add_f32 v[28:29], v[28:29], v[32:33]")
        e("v_pk_add_f32 v[30:31], v[30:31], v[34:35]")
        e("v_pk_add_f32 v[20:21], v[20:21], v[28:29]")
        e("v_pk_add_f32 v[22:23], v[22:23], v[30:31]")
        e("v_cvt_pk_bf16_f32 v20, v20, v21")
        e("v_cvt_pk_bf16_f32 v22, v22, v23")
        e(f"v_perm_b32 v12, v20, v{vTag}, s{sSelLo}")
        e(f"v_perm_b32 v13, v20, v{vTag}, s{sSelHi}")
        e(f"v_perm_b32 v14, v22, v{vTag}, s{sSelLo}")
        e(f"v_perm_b32 v15, v22, v{vTag}, s{sSelHi}")
        e(f"buffer_store_dwordx4 v[12:15], v8, {srd(SWS)}, s{sSO} offen{self.xf}")
        self.stamp(3)
        e("L_x_nop1:")
        e("v_lshlrev_b32 v8, 10, v4")
        e("v_lshl_add_u32 v8, v5, 4, v8")
        e(f"s_lshl_b32 s{sA}, s{sH}, 12")
        e(f"s_lshr_b32 s{sB}, s{sJ}, 2")
        e(f"s_lshl_b32 s{sB}, s{sB}, 8")
        e(f"s_add_u32 s{sA}, s{sA}, s{sB}")
        e(f"s_add_u32 s{sA}, s{sA}, {QOFF}")
        e("v_lshlrev_b32 v2, 3, v0")
        e(f"v_add_u32 v2, {QIMG}, v2")
        e(f"s_cmp_lt_u32 s{sJ}, 4")
        e("s_cbranch_scc1 L_x_qonly")
        e("v_mul_u32_u24 v9, 0x4800, v4")
        e("v_and_b32 v11, 1, v5")
        e("v_lshl_add_u32 v10, v11, 4, v9")
        e("v_lshl_add_u32 v9, v5, 4, v9")
        e(f"s_mul_i32 s{sB}, s{sRG}, 288")
        e(f"s_add_u32 s{sB}, s{sB}, {GOFF}")
        e(f"s_add_u32 s{sSO}, s{sB}, 73728")
        self.poll_head("L_pg")
        e(f"buffer_load_dwordx4 v[20:23], v8, {srd(SWS)}, s{sA} offen{self.xf}")
        e(f"buffer_load_dwordx4 v[24:27], v9, {srd(SWS)}, s{sB} offen{self.xf}")
        e(f"buffer_load_dwordx4 v[28:31], v9, {srd(SWS)}, s{sSO} offen{self.xf}")
        e(f"buffer_load_dwordx4 v[32:35], v10, {srd(SWS)}, s{sB} offen offset:256{self.xf}")
        e(f"buffer_load_dwordx4 v[36:39], v10, {srd(SWS)}, s{sSO} offen offset:256{self.xf}")
        for u in range(5):
            e(f"s_waitcnt vmcnt({4-u})")
            e(f"v_perm_b32 v{12+u}, v{21+4*u}, v{20+4*u}, s{sSelLo}")
            e(f"v_xor_b32 v{12+u}, v{12+u}, v{vTag}")
        e("v_or3_b32 v12, v12, v13, v14")
        e("v_or3_b32 v12, v12, v15, v16")
        self.poll_tail("L_pg", 12)
        e(f"v_perm_b32 v12, v21, v20, s{sSelHi}")
        e(f"v_perm_b32 v13, v23, v22, s{sSelHi}")
        e("ds_write_b64 v2, v[12:13]")
        e("v_mul_u32_u24 v14, 0xa0, v4")
        e("v_lshl_add_u32 v15, v11, 3, v14")
        e(f"v_add_u32 v15, {HIMG+128}, v15")
        e("v_lshl_add_u32 v14, v5, 3, v14")
        e(f"v_add_u32 v14, {HIMG}, v14")
        for k in range(24, 40):
            e(f"v_and_b32 v{k}, s{sC0}, v{k}")
        for base in (24, 32):
            for k in range(4):
                e(f"v_max_f32 v{base+k}, 0, v{base+k}")
            for k in range(4):
                e(f"v_mul_f32 v{base+k}, v{base+k}, v{base+4+k}")
        e("v_cvt_pk_bf16_f32 v16, v24, v25")
        e("v_cvt_pk_bf16_f32 v17, v26, v27")
        e("v_cvt_pk_bf16_f32 v18, v32, v33")
        e("v_cvt_pk_bf16_f32 v19, v34, v35")
        e("ds_write_b64 v14, v[16:17]")
        e("ds_write_b64 v15, v[18:19]")
        e("s_branch L_x_b2")
        e("L_x_qonly:")
        self.poll_head("L_pq")
        e(f"buffer_load_dwordx4 v[20:23], v8, {srd(SWS)}, s{sA} offen{self.xf}")
        e("s_waitcnt vmcnt(0)")
        e(f"v_perm_b32 v12, v21, v20, s{sSelLo}")
        e(f"v_xor_b32 v12, v12, v{vTag}")
        self.poll_tail("L_pq", 12)
        e(f"v_perm_b32 v12, v21, v20, s{sSelHi}")
        e(f"v_perm_b32 v13, v23, v22, s{sSelHi}")
        e("ds_write_b64 v2, v[12:13]")
        e("L_x_b2:")
        if self.diag:
            e(f"s_mov_b32 s{sSTAMP+2*15}, s{sCNT}")
        e("s_waitcnt lgkmcnt(0)")
        self.stamp(4)
        e("s_barrier")
        e("v_lshrrev_b32 v8, 5, v0")
        e("v_lshlrev_b32 v8, 4, v8")
        e(f"v_add_u32 v8, {MAXT}, v8")
        e(f"v_add_u32 v2, {OPART}, v1")
        e("v_lshlrev_b32 v9, 12, v4")
        e("v_lshl_add_u32 v9, v5, 4, v9")
        e(f"s_lshl_b32 s{sA}, s{sH}, 14")
        e(f"s_and_b32 s{sB}, s{sJ}, 3")
        e(f"s_lshl_b32 s{sB}, s{sB}, 10")
        e(f"s_add_u32 s{sA}, s{sA}, s{sB}")
        e(f"s_lshr_b32 s{sB}, s{sJ}, 2")
        e(f"s_lshl_b32 s{sB}, s{sB}, 8")
        e(f"s_add_u32 s{sA}, s{sA}, s{sB}")
        e(f"s_add_u32 s{sA}, s{sA}, {OOFF}")
        e("s_barrier")
        e("ds_read_b128 v[12:15], v8")
        e("s_waitcnt lgkmcnt(0)")
        e("v_max3_f32 v10, v12, v13, v14")
        e("v_max_f32 v10, v10, v15")
        e(f"v_mul_f32 v10, {hex(f2u(CSCALE))}, v10")
        self.stamp(5)
        e("s_barrier")
        self.stamp(6)
        e(f"ds_read_b128 v[12:15], v8 offset:{LT-MAXT}")
        for w in range(4):
            e(f"ds_read_b128 {vr(20+4*w,4)}, v2 offset:{1024*w}")
        e("s_waitcnt lgkmcnt(4)")
        e("v_add_f32 v12, v12, v13")
        e("v_add_f32 v14, v14, v15")
        e("v_add_f32 v12, v12, v14")
        e("v_rcp_f32 v13, v12")
        e("v_log_f32 v12, v12")
        e("s_waitcnt lgkmcnt(2)")
        e("v_pk_add_f32 v[20:21], v[20:21], v[24:25]")
        e("v_pk_add_f32 v[22:23], v[22:23], v[26:27]")
        e("v_add_f32 v10, v10, v12")
        e("s_waitcnt lgkmcnt(0)")
        e("v_pk_add_f32 v[28:29], v[28:29], v[32:33]")
        e("v_pk_add_f32 v[30:31], v[30:31], v[34:35]")
        e("v_pk_add_f32 v[20:21], v[20:21], v[28:29]")
        e("v_pk_add_f32 v[22:23], v[22:23], v[30:31]")
        for k in range(4):
            e(f"v_mul_f32 v{20+k}, v13, v{20+k}")
        e("v_cvt_pk_bf16_f32 v20, v20, v21")
        e("v_cvt_pk_bf16_f32 v22, v22, v23")
        e(f"v_perm_b32 v12, v20, v{vTag}, s{sSelLo}")
        e(f"v_perm_b32 v13, v20, v{vTag}, s{sSelHi}")
        e(f"v_perm_b32 v14, v22, v10, s{sSelLo}")
        e(f"v_perm_b32 v15, v22, v10, s{sSelHi}")
        e(f"buffer_store_dwordx4 v[12:15], v9, {srd(SWS)}, s{sA} offen{self.xf}")
        self.stamp(7)
        if self.spin:
            e(f"s_cmp_ge_u32 s{sJ}, 4")
            e("s_cbranch_scc1 L_spin_out")
            e(f"s_add_u32 s6, s6, {self.spin*100}")
            e(f"s_mov_b32 s{sCNT}, 0")
            e("L_spin:")
            e("s_memrealtime s[4:5]")
            e(f"s_add_u32 s{sCNT}, s{sCNT}, 1")
            e("s_waitcnt lgkmcnt(0)")
            e(f"s_cmp_gt_u32 s{sCNT}, 100000")
            e("s_cbranch_scc1 L_spin_out")
            e("s_sub_u32 s4, s4, s6")
            e("s_cmp_lt_i32 s4, 0")
            e("s_cbranch_scc1 L_spin")
            e("L_spin_out:")
        self.end()

    def build(self):
        e = self.e
        self.header()
        self.prologue()
        q0 = list(self.q)
        e(f"s_cmp_ge_u32 s{sJ}, 13")
        e("s_cbranch_scc1 L_an")
        self.section_A(True)
        qa = list(self.q)
        e("L_b:")
        self.section_B()
        qb = list(self.q)
        e(f"s_cmp_lt_u32 s{sJ}, 4")
        e("s_cbranch_scc1 L_c2")
        e("s_cmp_eq_u32 s3, 3")
        e("s_cbranch_scc1 L_c2")
        self.section_C(True)
        self.section_D1()
        e("L_c2:")
        self.q = list(qb)
        self.section_C(False)
        e(f"s_cmp_lt_u32 s{sJ}, 4")
        e("s_cbranch_scc1 L_d3")
        self.section_D2()
        e("L_d3:")
        self.section_D3()
        e("L_an:")
        self.q = list(q0)
        self.section_A(False)
        assert len(self.q) <= len(qa) and qa[len(qa) - len(self.q):] == self.q, (qa, self.q)
        e("s_branch L_b")
        self.q = list(q0)
        self.xwave()
        e("L_exit:")
        e("s_endpgm")
        self.footer()
        return "\n".join(self.o) + "\n"


if __name__ == "__main__":
    import argparse
    ap = argparse.ArgumentParser()
    ap.add_argument("out")
    ap.add_argument("--W", type=int, default=8)
    ap.add_argument("--W3", type=int, default=8)
    ap.add_argument("--qpos", type=int, default=12)
    ap.add_argument("--no-nt", action="store_true")
    ap.add_argument("--no-pf", action="store_true")
    ap.add_argument("--diag", action="store_true")
    ap.add_argument("--xflags", default="sc1")
    ap.add_argument("--spin", type=int, default=0)
    ap.add_argument("--amp", type=int, default=0)
    a = ap.parse_args()
    g = Gen(W=a.W, qpos=a.qpos, nt=not a.no_nt, diag=a.diag, W3=a.W3, xflags=a.xflags, pf=not a.no_pf, spin=a.spin, amp=a.amp)
    text = g.build()
    open(a.out, "w").write(text)
    import hazard
    pr = hazard.check(text)
    for x in pr:
        print("HAZARD", x)
```
